```python
import torch

def _softmax(x, axis=-1):
    return torch.softmax(x, dim=axis)

def _gelu(x):
    return torch.nn.functional.gelu(x, approximate='tanh')

def _silu(x):
    return torch.nn.functional.silu(x)

def _sigmoid(x):
    return torch.sigmoid(x)

def _layernorm(x, axis=-1, eps=1e-05):
    m = x.mean(dim=axis, keepdim=True)
    v = x.var(dim=axis, keepdim=True, unbiased=False)
    return (x - m) / torch.sqrt(v + eps)

def _scatter_add(tgt, idx, src, axis=0):
    return tgt.clone().index_add_(axis, idx, src)

def _segment_sum(src, seg, n):
    out = torch.zeros((n,) + src.shape[1:], dtype=src.dtype)
    return out.index_add_(0, seg, src)

def _pad(x, pw):
    flat = tuple((v for pair in reversed(pw) for v in pair))
    return torch.nn.functional.pad(x, flat)
kernel_name = 'interleave_layers__spectral_fnet__mixer_gmlp__prompt'

def setup_inputs():

    _w = lambda a: (lambda t: t.to(torch.bfloat16) if t.is_floating_point() else t)(torch.as_tensor(a))

    def _A_setup():
        B, S, D = (1, 2048, 1024)
        ns = torch.arange(S)[:, None] * torch.arange(S)[None, :]
        nd = torch.arange(D)[:, None] * torch.arange(D)[None, :]
        Ws_re = torch.cos(-2.0 * torch.pi * ns / S).to(float)
        Ws_im = torch.sin(-2.0 * torch.pi * ns / S).to(float)
        Wd_re = torch.cos(-2.0 * torch.pi * nd / D).to(float)
        Wd_im = torch.sin(-2.0 * torch.pi * nd / D).to(float)
        return {'x': _w((lambda *s: torch.randn(*s, dtype=torch.bfloat16) * 0.05)(B, S, D)), 'dft_seq_re': _w(Ws_re), 'dft_seq_im': _w(Ws_im), 'dft_hid_re': _w(Wd_re), 'dft_hid_im': _w(Wd_im)}
    _A_in = _A_setup()

    def _B_setup():
        B, S, D, F = (1, 2048, 1024, 3584)
        Fh = F // 2
        return {'x': _w((lambda *s: torch.randn(*s, dtype=torch.bfloat16) * 0.05)(B, S, D)), 'w_in': _w((lambda *s: torch.randn(*s, dtype=torch.bfloat16) * 1.6)(D, 2 * Fh)), 'w_sp': _w(0.01 * (lambda *s: torch.randn(*s, dtype=torch.bfloat16) * 1.6)(S, S)), 'b_sp': _w(1.0 + 0.01 * (lambda *s: torch.randn(*s, dtype=torch.bfloat16) * 1.6)(S)), 'w_out': _w((lambda *s: torch.randn(*s, dtype=torch.bfloat16) * 1.6)(Fh, D))}
    _B_in = _B_setup()
    return {'A_x': _A_in['x'], 'A_dft_seq_re': _A_in['dft_seq_re'], 'A_dft_seq_im': _A_in['dft_seq_im'], 'A_dft_hid_re': _A_in['dft_hid_re'], 'A_dft_hid_im': _A_in['dft_hid_im'], 'B_x': _B_in['x'], 'B_w_in': _B_in['w_in'], 'B_w_sp': _B_in['w_sp'], 'B_b_sp': _B_in['b_sp'], 'B_w_out': _B_in['w_out']}

def reference(A_x, A_dft_seq_re, A_dft_seq_im, A_dft_hid_re, A_dft_hid_im, B_x, B_w_in, B_w_sp, B_b_sp, B_w_out):

    def _A_ref(x, dft_seq_re, dft_seq_im, dft_hid_re, dft_hid_im):
        a = torch.einsum('bsd,ed->bse', x, dft_hid_re)
        b = torch.einsum('bsd,ed->bse', x, dft_hid_im)
        y = torch.einsum('ts,bse->bte', dft_seq_re, a) - torch.einsum('ts,bse->bte', dft_seq_im, b)
        return y

    def _B_ref(x, w_in, w_sp, b_sp, w_out):
        B, S, D = x.shape
        F = w_in.shape[-1]
        Fh = F // 2
        z = _gelu(torch.einsum('bsd,df->bsf', x, w_in))
        z1 = z[..., :Fh].clone()
        z2 = _layernorm(z[..., Fh:], axis=-1)
        g = torch.einsum('ts,bsf->btf', w_sp, z2) + b_sp[None, :, None]
        return torch.einsum('bsf,fd->bsd', z1 * g, w_out)
    x = A_x
    x = x + _A_ref(_layernorm(x, axis=-1), A_dft_seq_re, A_dft_seq_im, A_dft_hid_re, A_dft_hid_im)
    x = x + _B_ref(_layernorm(x, axis=-1), B_w_in, B_w_sp, B_b_sp, B_w_out)
    x = x + _A_ref(_layernorm(x, axis=-1), A_dft_seq_re, A_dft_seq_im, A_dft_hid_re, A_dft_hid_im)
    x = x + _B_ref(_layernorm(x, axis=-1), B_w_in, B_w_sp, B_b_sp, B_w_out)
    return x
```

```python
class Asm:
    def __init__(self):
        self.lines = []
        self.kernels = []
        self.launches = []
        self.nlabel = 0
        self.rodata = []
    def __call__(self, s):
        for ln in s.strip('\n').split('\n'):
            self.lines.append('    ' + ln.strip() if not ln.strip().endswith(':') else ln.strip())
    def c(self, s):
        self.lines.append('    ; ' + s)
    def label(self, base='L'):
        self.nlabel += 1
        return f'{base}_{self.nlabel}'
    def place(self, lab):
        self.lines.append(lab + ':')
    def begin_kernel(self, name):
        self.lines.append('')
        self.lines.append(f'.globl {name}')
        self.lines.append('.p2align 8')
        self.lines.append(f'.type {name},@function')
        self.lines.append(f'{name}:')
    def end_kernel(self, name, vgpr, sgpr=96, accum=None):
        if accum is None:
            accum = (vgpr + 3) // 4 * 4
        self.kernels.append((name, vgpr, sgpr, accum))
    def launch(self, name, grid, block, lds):
        self.launches.append((name, grid, block, lds))
    def text(self, header):
        out = [header.rstrip('\n')]
        for (n, g, b, l) in self.launches:
            out.append(f'; @launch kernel={n} grid=({g},1,1) block=({b},1,1) lds={l}')
        out.append('.amdgcn_target "amdgcn-amd-amdhsa--gfx950"')
        out.append('.text')
        out += self.lines
        out.append('.section .rodata,"a"')
        for (n, v, s, a) in self.kernels:
            out.append('.p2align 6')
            out.append(f'.amdhsa_kernel {n}')
            out.append(f'  .amdhsa_next_free_vgpr {v}')
            out.append(f'  .amdhsa_next_free_sgpr {s}')
            out.append(f'  .amdhsa_accum_offset {a}')
            out.append('  .amdhsa_group_segment_fixed_size 0')
            out.append('  .amdhsa_kernarg_size 104')
            out.append('  .amdhsa_user_sgpr_count 2')
            out.append('  .amdhsa_user_sgpr_kernarg_segment_ptr 1')
            out.append('  .amdhsa_system_sgpr_workgroup_id_x 1')
            out.append('  .amdhsa_float_denorm_mode_32 3')
            out.append('.end_amdhsa_kernel')
        return '\n'.join(out) + '\n'

def vr(a, n=1):
    return f'v{a}' if n == 1 else f'v[{a}:{a+n-1}]'
def sr(a, n=1):
    return f's{a}' if n == 1 else f's[{a}:{a+n-1}]'

KA = dict(x=0, sre=8, sim=16, hre=24, him=32, bx=40, w_in=48, w_sp=56, b_sp=64, w_out=72, out=80, dbg=88, ws=96)
HEADER = open('interleave_layers__spectral_fnet__mixer_gmlp__prompt.s.ref').read().split('; Override launch')[0]
```

```python
from gemm2 import *

def dpp_reduce16(a, regs, tmp):
    for T in range(2):
        for i in range(2):
            for r in range(4):
                x = regs[(T, i, r)]
                a(f'v_add_f32_dpp v{x}, v{x}, v{x} row_ror:8 row_mask:0xf bank_mask:0x3')
    for T in range(2):
        for i in range(2):
            for r in range(4):
                x = regs[(T, i, r)]; y = regs[(T, i + 2, r)]
                a(f'v_add_f32_dpp v{x}, v{y}, v{y} row_ror:8 row_mask:0xf bank_mask:0xc')
    for T in range(2):
        for r in range(4):
            x = regs[(T, 0, r)]
            a(f'v_add_f32_dpp v{x}, v{x}, v{x} row_half_mirror row_mask:0xf bank_mask:0x5')
    for T in range(2):
        for r in range(4):
            x = regs[(T, 0, r)]; y = regs[(T, 1, r)]
            a(f'v_add_f32_dpp v{x}, v{y}, v{y} row_half_mirror row_mask:0xf bank_mask:0xa')
    for pat in ('[1,0,3,2]', '[2,3,0,1]'):
        for T in range(2):
            for r in range(4):
                x = regs[(T, 0, r)]
                a(f'v_add_f32_dpp v{x}, v{x}, v{x} quad_perm:{pat} row_mask:0xf bank_mask:0xf')
    for r in range(1, 4):
        m = 0x1111111111111111 << r
        a(f's_mov_b32 s{tmp}, {m & 0xffffffff}')
        a(f's_mov_b32 s{tmp+1}, {m >> 32}')
        for T in range(2):
            a(f'v_cndmask_b32 v{regs[(T,0,0)]}, v{regs[(T,0,0)]}, v{regs[(T,0,r)]}, s[{tmp}:{tmp+1}]')
    return [regs[(0, 0, 0)], regs[(1, 0, 0)]]

class EpiBase:
    def loads(self, a, c): pass
    def cons_pre(self, a, c): pass
    def cons_pre2(self, a, c): pass

class EpiG1(EpiBase):
    def consumer(self, a, c):
        NT = c.NT
        C0 = -2.0 * 0.7978845608028654 * 1.4426950408889634
        C1 = C0 * 0.044715
        K0 = 2; K1 = 4
        T = c.V0
        ST = c.V0 + 40
        a(f'v_mov_b32 v{K0}, {f32(C0)}')
        a(f'v_mov_b32 v{K0+1}, {f32(C0)}')
        a(f'v_mov_b32 v{K1}, {f32(C1)}')
        a(f'v_mov_b32 v{K1+1}, {f32(C1)}')
        srd(a, 12, 38, WS_ZT, 3584 * 4096)
        a('v_and_b32 v1, 15, v0')
        a('v_lshlrev_b32 v1, 12, v1')
        a('v_bfe_u32 v6, v0, 4, 1')
        a('v_lshl_add_u32 v1, v6, 5, v1')
        a('v_bfe_u32 v6, v0, 5, 1')
        a('v_lshl_add_u32 v1, v6, 4, v1')
        a('s_lshl_b32 s24, s17, 1')
        a('s_add_u32 s24, s24, s22')
        a(f's_mul_i32 s24, s24, {112*4096}')
        a('s_lshl_b32 s25, s16, 8')
        a('s_add_u32 s24, s24, s25')
        a('s_lshl_b32 s25, s21, 7')
        a('s_add_u32 s24, s24, s25')
        for r in range(32):
            a(f'v_mov_b32 v{ST+r}, 0')
        S = lambda Tt, i, r: ST + Tt * 16 + i * 4 + r
        a('s_nop 7')
        for j in range(NT):
            for ip in range(2):
                ob = T + 16 + 4 * ((2 * j + ip) % 4)
                prs = []
                for ii in range(2):
                    A = c.ACC(2 * ip + ii, j)
                    for hh in range(2):
                        prs.append((A + 2 * hh, T + 4 * ii + 2 * hh, 2 * ip + ii, hh))
                for (x, t, i, hh) in prs:
                    a(f'v_pk_mul_f32 {vr(t,2)}, {vr(x,2)}, {vr(x,2)}')
                for (x, t, i, hh) in prs:
                    a(f'v_pk_fma_f32 {vr(t,2)}, {vr(t,2)}, {vr(K1,2)}, {vr(K0,2)}')
                for (x, t, i, hh) in prs:
                    a(f'v_pk_mul_f32 {vr(t,2)}, {vr(t,2)}, {vr(x,2)}')
                for (x, t, i, hh) in prs:
                    a(f'v_exp_f32 v{t}, v{t}')
                    a(f'v_exp_f32 v{t+1}, v{t+1}')
                for (x, t, i, hh) in prs:
                    a(f'v_pk_add_f32 {vr(t,2)}, {vr(t,2)}, 1.0 op_sel_hi:[1,0]')
                for (x, t, i, hh) in prs:
                    a(f'v_rcp_f32 v{t}, v{t}')
                    a(f'v_rcp_f32 v{t+1}, v{t+1}')
                for (x, t, i, hh) in prs:
                    a(f'v_pk_mul_f32 {vr(x,2)}, {vr(t,2)}, {vr(x,2)}')
                for k, (x, t, i, hh) in enumerate(prs):
                    a(f'v_cvt_pk_bf16_f32 v{ob+k}, v{x}, v{x+1}')
                for (x, t, i, hh) in prs:
                    a(f'v_pk_add_f32 {vr(S(0,i,2*hh),2)}, {vr(S(0,i,2*hh),2)}, {vr(x,2)}')
                    a(f'v_pk_fma_f32 {vr(S(1,i,2*hh),2)}, {vr(x,2)}, {vr(x,2)}, {vr(S(1,i,2*hh),2)}')
                a(f'v_permlane16_swap_b32 v{ob}, v{ob+2}')
                a(f'v_permlane16_swap_b32 v{ob+1}, v{ob+3}')
                if 'no_st' not in c.flags: a(f'buffer_store_dwordx4 {vr(ob,4)}, v1, s[12:15], s24 offen offset:{ip*64}{c.stflag}')
            a('s_add_u32 s24, s24, 65536')
        Ld = a.label('nostat')
        a('s_cmp_lt_u32 s17, 8')
        a(f's_cbranch_scc1 {Ld}')
        regs = {(Tt, i, r): S(Tt, i, r) for Tt in range(2) for i in range(4) for r in range(4)}
        out = dpp_reduce16(a, regs, 26)
        a('v_bfe_u32 v6, v0, 2, 2')
        a('v_lshlrev_b32 v6, 4, v6')
        a('v_lshrrev_b32 v7, 4, v0')
        a('v_lshl_add_u32 v6, v7, 2, v6')
        a('v_and_b32 v7, 3, v0')
        a('v_add_u32 v6, v6, v7')
        a('v_lshlrev_b32 v6, 3, v6')
        a('s_lshl_b32 s24, s16, 10')
        a('s_lshl_b32 s25, s21, 9')
        a('s_add_u32 s24, s24, s25')
        a('s_lshl_b32 s25, s33, 14')
        a(f's_add_u32 s25, s25, {WS_ST + 2*16384}')
        srd(a, 12, 38, 's25', 16384)
        a(f'buffer_atomic_add_f32 v{out[0]}, v6, s[12:15], s24 offen')
        a(f'buffer_atomic_add_f32 v{out[1]}, v6, s[12:15], s24 offen offset:4')
        a.place(Ld)

def exchange(a, c, ntile, rbase):
    NT = c.NT
    a('v_lshlrev_b32 v2, 4, v0')
    a(f's_mul_i32 s24, s3, {2*NT*1024}')
    a('v_add_u32 v3, s24, v2')
    a('s_xor_b32 s25, s3, 2')
    a(f's_mul_i32 s24, s25, {2*NT*1024}')
    a('v_add_u32 v2, s24, v2')
    a('s_nop 7')
    for t in range(2 * NT):
        a(f'ds_write_b128 v3, {vr(c.ACC(2, 0) + 4*t, 4)} offset:{t*1024}')
    a('s_waitcnt lgkmcnt(0)')
    a('s_barrier')
    for t in range(2 * NT):
        a(f'ds_read_b128 {vr(rbase + 4*t, 4)}, v2 offset:{t*1024}')

class EpiG2(EpiBase):
    Z1 = 216
    def loads(self, a, c):
        a(f's_load_dwordx2 s[40:41], s[0:1], {KA["b_sp"]}')
    def cons_pre(self, a, c):
        a('s_lshl_b32 s24, s3, 6')
        a('v_add_u32 v1, s24, v0')
        a('v_lshlrev_b32 v1, 6, v1')
        a('s_lshl_b32 s25, s33, 14')
        a(f's_add_u32 s25, s25, {WS_ST + 2*16384}')
        a('v_and_b32 v15, 15, v0')
        a('v_lshlrev_b32 v15, 12, v15')
        a('v_bfe_u32 v6, v0, 4, 1')
        a('v_lshlrev_b32 v7, 5, v6')
        a('v_bfe_u32 v6, v0, 5, 1')
        a('v_lshl_add_u32 v7, v6, 4, v7')
        a('v_add_u32 v15, v15, v7')
        a('s_lshl_b32 s43, s16, 8')
        a('s_lshl_b32 s24, s21, 7')
        a('s_add_u32 s43, s43, s24')
        a('s_lshl_b32 s24, s22, 6')
        a('s_add_u32 s43, s43, s24')
        a(f's_mul_i32 s42, s17, {112*4096}')
        a('s_add_u32 s42, s42, s43')
        a('s_waitcnt lgkmcnt(0)')
        if c.bmode == 'kcnorm':
            srd(a, 12, 38, 's25', 16384)
            for q in range(4):
                a(f'buffer_load_dwordx4 {vr(c.V0 + 4*q, 4)}, v1, s[12:15], 0 offen offset:{16*q}')
        srd(a, 44, 40, 0, 4096)
        a(f'buffer_load_dwordx4 {vr(self.Z1+28, 4)}, v7, s[44:47], s43 offen')
        srd(a, 12, 38, WS_ZT, 1792 * 4096)
        a('s_mov_b32 s24, s42')
        for j in range(7):
            a(f'buffer_load_dwordx4 {vr(self.Z1 + 4*j, 4)}, v15, s[12:15], s24 offen')
            if j < 6: a('s_add_u32 s24, s24, 65536')
        a(f'v_add_u32 v{self.Z1+32}, {c.tab}, v1')
    def cons_pre2(self, a, c):
        if c.bmode != 'kcnorm': return
        V = c.V0
        O = c.V0 + 16
        a('s_waitcnt vmcnt(8)')
        inv = f32(1.0 / 1792.0)
        for k in range(8):
            a(f'v_mul_f32 v{V+2*k}, {inv}, v{V+2*k}')
            a(f'v_mul_f32 v{V+2*k+1}, {inv}, v{V+2*k+1}')
        for k in range(8):
            a(f'v_fma_f32 v{V+2*k+1}, -v{V+2*k}, v{V+2*k}, v{V+2*k+1}')
        for k in range(8):
            a(f'v_max_f32 v{V+2*k+1}, 0, v{V+2*k+1}')
            a(f'v_add_f32 v{V+2*k+1}, {f32(1e-5)}, v{V+2*k+1}')
        for k in range(8):
            a(f'v_rsq_f32 v{O+k}, v{V+2*k+1}')
        a('s_nop 0')
        for k in range(8):
            a(f'v_mul_f32 v{O+8+k}, v{V+2*k}, v{O+k}')
        for k in range(8):
            a(f'v_sub_f32 v{O+8+k}, 0, v{O+8+k}')
        for q in range(4):
            a(f'ds_write_b128 v{self.Z1+32}, {vr(O + 4*q, 4)} offset:{16*q}')
        a('s_waitcnt lgkmcnt(0)')
        a('s_barrier')
    def consumer(self, a, c):
        NT = c.NT
        RB = c.V0
        exchange(a, c, 2 * NT, RB)
        BI = c.V0 + 56
        T = c.V0 + 64
        a('s_waitcnt vmcnt(0)')
        for d in range(4):
            a(f'v_lshlrev_b32 v{BI+2*d}, 16, v{self.Z1+28+d}')
            a(f'v_and_b32 v{BI+2*d+1}, 0xffff0000, v{self.Z1+28+d}')
        srd(a, 12, 38, WS_HT, 1792 * 4096)
        for j in range(NT):
            a(f's_waitcnt lgkmcnt({min(15, NT - 1 - j)})')
            A0 = c.ACC(0, j); A1 = c.ACC(1, j)
            for (A, R) in ((A0, RB + 4 * j), (A1, RB + 4 * (NT + j))):
                for hh in range(2):
                    a(f'v_pk_add_f32 {vr(A+2*hh,2)}, {vr(A+2*hh,2)}, {vr(R+2*hh,2)}')
            for d in range(4):
                z = self.Z1 + 4 * j + d
                a(f'v_lshlrev_b32 v{T+2*d}, 16, v{z}')
                a(f'v_and_b32 v{T+2*d+1}, 0xffff0000, v{z}')
            for r in range(4):
                a(f'v_permlane16_swap_b32 v{A0+r}, v{A1+r}')
            prs = [A0, A0 + 2, A1, A1 + 2]
            for d in range(4):
                a(f'v_pk_add_f32 {vr(prs[d],2)}, {vr(prs[d],2)}, {vr(BI+2*d,2)}')
            for d in range(4):
                a(f'v_pk_mul_f32 {vr(prs[d],2)}, {vr(prs[d],2)}, {vr(T+2*d,2)}')
            for d in range(4):
                a(f'v_cvt_pk_bf16_f32 v{self.Z1+4*j+d}, v{prs[d]}, v{prs[d]+1}')
            a(f'buffer_store_dwordx4 {vr(self.Z1+4*j,4)}, v15, s[12:15], s42 offen{c.stflag}')
            a('s_add_u32 s42, s42, 65536')

class EpiG3(EpiBase):
    X1 = 160
    def loads(self, a, c):
        a(f's_load_dwordx2 s[40:41], s[0:1], {KA["out"]}')
    def cons_pre(self, a, c):
        a('v_and_b32 v15, 15, v0')
        a('v_lshlrev_b32 v15, 11, v15')
        a('v_bfe_u32 v6, v0, 4, 1')
        a('v_lshl_add_u32 v15, v6, 5, v15')
        a('v_bfe_u32 v6, v0, 5, 1')
        a('v_lshl_add_u32 v15, v6, 4, v15')
        a('s_lshl_b32 s43, s16, 7')
        a('s_lshl_b32 s24, s21, 6')
        a('s_add_u32 s43, s43, s24')
        a('s_lshl_b32 s24, s22, 5')
        a('s_add_u32 s43, s43, s24')
        a('s_lshl_b32 s42, s43, 11')
        a('s_lshl_b32 s24, s17, 7')
        a('s_add_u32 s42, s42, s24')
        a('s_add_u32 s48, s42, 32768')
        a('s_waitcnt lgkmcnt(0)')
        srd(a, 12, 38, WS_X1, 4 * MB)
        for i in range(2):
            for jp in range(2):
                a(f'buffer_load_dwordx4 {vr(self.X1 + 8*i + 4*jp, 4)}, v15, s[12:15], s{42 if i == 0 else 48} offen offset:{jp*64}')
    def consumer(self, a, c):
        NT = c.NT
        RB = c.V0
        exchange(a, c, 2 * NT, RB)
        T = c.V0 + 32
        ST = c.V0 + 40
        a(f's_add_u32 s24, s38, {WS_X2}')
        a('s_addc_u32 s25, s39, 0')
        a('s_cmp_eq_u32 s33, 0')
        a('s_cselect_b32 s12, s24, s40')
        a('s_cselect_b32 s13, s25, s41')
        a(f's_mov_b32 s14, {4*MB}')
        a('s_mov_b32 s15, 0x20000')
        for r in range(8):
            a(f'v_mov_b32 v{ST+r}, 0')
        a('s_waitcnt vmcnt(0)')
        for i in range(2):
            for jp in range(2):
                a(f's_waitcnt lgkmcnt({2*NT - (i*NT + 2*jp + 2)})')
                A0 = c.ACC(i, 2 * jp); A1 = c.ACC(i, 2 * jp + 1)
                for (A, R) in ((A0, RB + 4 * (i * NT + 2 * jp)), (A1, RB + 4 * (i * NT + 2 * jp + 1))):
                    for hh in range(2):
                        a(f'v_pk_add_f32 {vr(A+2*hh,2)}, {vr(A+2*hh,2)}, {vr(R+2*hh,2)}')
                X = self.X1 + 8 * i + 4 * jp
                for d in range(4):
                    a(f'v_lshlrev_b32 v{T+2*d}, 16, v{X+d}')
                    a(f'v_and_b32 v{T+2*d+1}, 0xffff0000, v{X+d}')
                for r in range(4):
                    a(f'v_permlane16_swap_b32 v{A0+r}, v{A1+r}')
                prs = [A0, A0 + 2, A1, A1 + 2]
                for d in range(4):
                    a(f'v_pk_add_f32 {vr(prs[d],2)}, {vr(prs[d],2)}, {vr(T+2*d,2)}')
                for d in range(4):
                    a(f'v_cvt_pk_bf16_f32 v{X+d}, v{prs[d]}, v{prs[d]+1}')
                a(f'buffer_store_dwordx4 {vr(X,4)}, v15, s[12:15], s{42 if i == 0 else 48} offen offset:{jp*64}{c.stflag}')
                for d in range(4):
                    a(f'v_pk_add_f32 {vr(ST+4*i,2)}, {vr(ST+4*i,2)}, {vr(prs[d],2)}')
                    a(f'v_pk_fma_f32 {vr(ST+4*i+2,2)}, {vr(prs[d],2)}, {vr(prs[d],2)}, {vr(ST+4*i+2,2)}')
        Ld = a.label('g3done')
        a('s_cmp_lg_u32 s33, 0')
        a(f's_cbranch_scc1 {Ld}')
        RS = 144
        a('v_and_b32 v2, 15, v0')
        a(f'v_mul_u32_u24 v2, {RS}, v2')
        a('v_bfe_u32 v6, v0, 4, 1')
        a('v_lshl_add_u32 v2, v6, 5, v2')
        a('v_bfe_u32 v6, v0, 5, 1')
        a('v_lshl_add_u32 v2, v6, 4, v2')
        a(f's_mul_i32 s24, s3, {32*RS}')
        a('s_add_u32 s24, s24, 32768')
        a('v_add_u32 v2, s24, v2')
        for i in range(2):
            for jp in range(2):
                X = self.X1 + 8 * i + 4 * jp
                a(f'ds_write_b128 v2, {vr(X,4)} offset:{i*16*RS + jp*64}')
        for i in range(2):
            a(f'v_add_f32 v{ST+4*i}, v{ST+4*i}, v{ST+4*i+1}')
            a(f'v_add_f32 v{ST+4*i+2}, v{ST+4*i+2}, v{ST+4*i+3}')
        a('s_nop 1')
        for i in range(2):
            a(f'v_permlane16_swap_b32 v{ST+4*i}, v{ST+4*i+2}')
        a('s_nop 1')
        for i in range(2):
            a(f'v_add_f32 v{ST+4*i}, v{ST+4*i}, v{ST+4*i+2}')
        a('s_nop 1')
        a(f'v_permlane32_swap_b32 v{ST}, v{ST+4}')
        a('s_nop 1')
        a(f'v_add_f32 v{ST}, v{ST}, v{ST+4}')
        a('v_and_b32 v3, 15, v0')
        a('v_lshl_add_u32 v3, v6, 4, v3')
        a('v_lshlrev_b32 v3, 3, v3')
        a('v_bfe_u32 v6, v0, 4, 1')
        a('v_lshl_add_u32 v3, v6, 2, v3')
        a('s_lshl_b32 s25, s43, 3')
        srd(a, 44, 38, WS_ST + 16384, 16384)
        a(f'buffer_atomic_add_f32 v{ST}, v3, s[44:47], s25 offen')
        a('v_bfe_u32 v3, v0, 2, 2')
        a('v_lshrrev_b32 v4, 4, v0')
        a('v_lshl_add_u32 v3, v4, 3, v3')
        a(f'v_mul_u32_u24 v3, {RS}, v3')
        a('v_and_b32 v5, 3, v0')
        a('v_lshl_add_u32 v3, v5, 3, v3')
        a('v_add_u32 v3, s24, v3')
        a('v_and_b32 v5, 15, v0')
        a('v_lshlrev_b32 v5, 12, v5')
        a('v_lshl_add_u32 v5, v4, 4, v5')
        a('s_lshl_b32 s24, s17, 18')
        a('s_lshl_b32 s25, s43, 1')
        a('s_add_u32 s24, s24, s25')
        srd(a, 12, 38, WS_XT, 4 * MB)
        a('s_waitcnt lgkmcnt(0)')
        for j in range(4):
            for u in range(2):
                a(f'ds_read_b64_tr_b16 {vr(RB + 4*j + 2*u, 2)}, v3 offset:{u*4*RS + j*32}')
        for j in range(4):
            a(f's_waitcnt lgkmcnt({6 - 2*j})')
            a(f'buffer_store_dwordx4 {vr(RB+4*j,4)}, v5, s[12:15], s24 offen{c.stflag}')
            a('s_add_u32 s24, s24, 65536')
        a.place(Ld)

def make_gemms(a, stflag='', flags=(), sfx='', g2mode='kc'):
    g1 = G(name='g1'+sfx, names=['g1a'+sfx+'_kernel', 'g1b'+sfx+'_kernel'], K=1024, BN=224, amode='kc', bmode='tr', ksplit=1, lda=2048, ldb=7168,
           a_src=('ws', WS_XN1), b_src=('w_in', 0), a_bytes=4*MB, b_bytes=1024*7168, xm=8, xn=4, swap=False, stflag=stflag)
    g2 = G(name='g2'+sfx, names=['g2a'+sfx+'_kernel', 'g2b'+sfx+'_kernel'], K=2048, BN=112, amode='kc', bmode=g2mode, ksplit=2, lda=4096, ldb=4096,
           a_src=('w_sp', 0), b_src=('ws', WS_ZT + 1792*4096), a_bytes=8*MB, b_bytes=1792*4096, xm=4, xn=8, swap=False, stflag=stflag)
    g3 = G(name='g3'+sfx, names=['g3a'+sfx+'_kernel', 'g3b'+sfx+'_kernel'], K=1792, BN=64, amode='tr', bmode='tr', ksplit=2, lda=4096, ldb=2048,
           a_src=('ws', WS_HT), b_src=('w_out', 0), a_bytes=1792*4096, b_bytes=1792*2048, xm=4, xn=8, swap=True, stflag=stflag)
    for g, e in ((g1, EpiG1()), (g2, EpiG2()), (g3, EpiG3())):
        g.flags = set(flags)
        gemm_kernel(a, g, e)
    return g1, g2, g3
```

```python
from gemm2 import *

def wave_sum(a, x, t):
    xs = x if isinstance(x, list) else [x]
    ts = t if isinstance(t, list) else [t]
    for mod in ('quad_perm:[1,0,3,2]', 'quad_perm:[2,3,0,1]', 'row_half_mirror', 'row_mirror'):
        a('s_nop 1')
        for r in xs:
            a(f'v_add_f32_dpp v{r}, v{r}, v{r} {mod} row_mask:0xf bank_mask:0xf')
    for op in ('v_permlane16_swap_b32', 'v_permlane32_swap_b32'):
        for r, tt in zip(xs, ts):
            a(f'v_mov_b32 v{tt}, v{r}')
        a('s_nop 1')
        for r, tt in zip(xs, ts):
            a(f'{op} v{r}, v{tt}')
        a('s_nop 1')
        for r, tt in zip(xs, ts):
            a(f'v_add_f32 v{r}, v{r}, v{tt}')

def scale_shift(a, V, O, n, cnt=8):
    inv = f32(1.0 / n)
    for k in range(cnt):
        a(f'v_mul_f32 v{V+2*k}, {inv}, v{V+2*k}')
        a(f'v_mul_f32 v{V+2*k+1}, {inv}, v{V+2*k+1}')
    for k in range(cnt):
        a(f'v_fma_f32 v{V+2*k+1}, -v{V+2*k}, v{V+2*k}, v{V+2*k+1}')
    for k in range(cnt):
        a(f'v_max_f32 v{V+2*k+1}, 0, v{V+2*k+1}')
        a(f'v_add_f32 v{V+2*k+1}, {f32(1e-5)}, v{V+2*k+1}')
    for k in range(cnt):
        a(f'v_rsq_f32 v{O+k}, v{V+2*k+1}')
    a('s_nop 0')
    for k in range(cnt):
        a(f'v_mul_f32 v{O+cnt+k}, -v{V+2*k}, v{O+k}')

def dft_consts(a, N, nks, C, S, vn, vh, tmp, scale=1.0):
    base = tmp
    a(f'v_mul_f32 v{base}, v{vn}, v{vh}')
    a(f'v_mul_f32 v{base}, {f32(1.0/N)}, v{base}')
    for ks in range(nks):
        for p in range(4):
            for z in range(2):
                e8 = 2 * p + z
                ce = 16 * ks + 8 * (e8 >> 2) + (e8 & 3)
                a(f'v_fmamk_f32 v{tmp+1+z}, v{vn}, {f32(ce / N)}, v{base}')
            a(f'v_cos_f32 v{tmp+3}, v{tmp+1}')
            a(f'v_cos_f32 v{tmp+4}, v{tmp+2}')
            a(f'v_sin_f32 v{tmp+1}, v{tmp+1}')
            a(f'v_sin_f32 v{tmp+2}, v{tmp+2}')
            if scale != 1.0:
                for r in (3, 4, 1, 2):
                    a(f'v_mul_f32 v{tmp+r}, {f32(scale)}, v{tmp+r}')
            else:
                a('s_nop 0')
            a(f'v_cvt_pk_f16_f32 v{C+4*ks+p}, v{tmp+3}, v{tmp+4}')
            a(f'v_cvt_pk_f16_f32 v{S+4*ks+p}, -v{tmp+1}, -v{tmp+2}')

def twiddles(a, N, nreg, TR, TI, vn, vh, tmp):
    a(f'v_mul_f32 v{tmp}, v{vn}, v{vh}')
    a(f'v_mul_f32 v{tmp}, {f32(-1.0/N)}, v{tmp}')
    for x in range(nreg):
        cb = 32 * (x >> 4) + 8 * ((x >> 2) & 3) + (x & 3)
        a(f'v_fmamk_f32 v{TI+x}, v{vn}, {f32(-cb / N)}, v{tmp}')
    for x in range(nreg):
        a(f'v_cos_f32 v{TR+x}, v{TI+x}')
        a(f'v_sin_f32 v{TI+x}, v{TI+x}')

def lane_nh(a, vn, vh):
    a(f'v_and_b32 v{vn}, 31, v0')
    a(f'v_cvt_f32_u32 v{vn}, v{vn}')
    a(f'v_lshrrev_b32 v{vh}, 5, v0')
    a(f'v_lshlrev_b32 v{vh}, 2, v{vh}')
    a(f'v_cvt_f32_u32 v{vh}, v{vh}')

def mf(d, x, y, first):
    return f'v_mfma_f32_32x32x16_f16 {vr(d,16)}, {vr(x,4)}, {vr(y,4)}, {"0" if first else vr(d,16)}'

def a1_kernel(a, stflag=''):
    names = ['a1a_kernel', 'a1b_kernel']
    body = a.label('a1_body')
    entry_stubs(a, names, body, 256)
    L_end = a.label('end')
    a('s_cmp_ge_u32 s2, 256')
    a(f's_cbranch_scc1 {L_end}')
    a(f's_load_dwordx2 s[38:39], s[0:1], {KA["ws"]}')
    a('v_mov_b32 v1, v0')
    a('v_lshrrev_b32 v2, 6, v0')
    a('v_and_b32 v0, 63, v0')
    a('v_readfirstlane_b32 s3, v2')
    a('v_lshlrev_b32 v2, 6, v1')
    a('v_lshlrev_b32 v3, 4, v1')
    a('s_lshr_b32 s16, s2, 5')
    a('s_lshl_b32 s16, s16, 7')
    a('s_and_b32 s17, s2, 31')
    a('s_add_u32 s16, s16, s17')
    a('s_lshl_b32 s16, s16, 12')
    a('s_lshl_b32 s25, s33, 14')
    a(f's_add_u32 s25, s25, {WS_ST}')
    a('s_waitcnt lgkmcnt(0)')
    srd(a, 4, 38, 's25', 16384)
    srd(a, 8, 38, WS_XT, 4 * MB)
    ST = 16; XD = 32; SC = 48; TMP = 64
    for q in range(4):
        a(f'buffer_load_dwordx4 {vr(ST+4*q,4)}, v2, s[4:7], 0 offen offset:{16*q}')
    for e in range(4):
        a(f'buffer_load_dwordx4 {vr(XD+4*e,4)}, v3, s[8:11], s16 offen')
        if e < 3: a(f's_add_u32 s16, s16, {32*4096}')
    C32 = 72; S32 = 80; C64 = 88; S64 = 104; TR = 120; TI = 152
    YR = 184; YI = 216
    lane_nh(a, 4, 5)
    dft_consts(a, 32, 2, C32, S32, 4, 5, 8)
    dft_consts(a, 64, 4, C64, S64, 4, 5, 8, scale=1.0/16)
    a('v_lshrrev_b32 v6, 3, v1')
    a('v_mul_u32_u24 v6, 192, v6')
    a('v_and_b32 v7, 7, v1')
    a('v_lshl_add_u32 v6, v7, 4, v6')
    a('s_waitcnt vmcnt(4)')
    scale_shift(a, ST, SC, 1024)
    for e in range(4):
        a(f's_waitcnt vmcnt({3-e})')
        for d in range(4):
            a(f'v_lshlrev_b32 v{TMP+2*d}, 16, v{XD+4*e+d}')
            a(f'v_and_b32 v{TMP+2*d+1}, 0xffff0000, v{XD+4*e+d}')
        for d in range(4):
            a(f'v_pk_fma_f32 {vr(TMP+2*d,2)}, {vr(TMP+2*d,2)}, {vr(SC+2*d,2)}, {vr(SC+8+2*d,2)}')
        for d in range(4):
            a(f'v_cvt_pk_f16_f32 v{XD+4*e+d}, v{TMP+2*d}, v{TMP+2*d+1}')
        a(f'ds_write_b128 v6, {vr(XD+4*e,4)} offset:{e*6144}')
    a('v_bfe_u32 v6, v0, 2, 2')
    a('v_lshrrev_b32 v7, 5, v0')
    a('v_lshl_add_u32 v6, v7, 2, v6')
    a('v_mul_u32_u24 v6, 192, v6')
    a('v_bfe_u32 v7, v0, 4, 1')
    a('v_lshl_add_u32 v6, v7, 5, v6')
    a('v_and_b32 v7, 3, v0')
    a('v_lshl_add_u32 v6, v7, 3, v6')
    a('s_mul_i32 s16, s3, 6144')
    a('v_add_u32 v6, s16, v6')
    a('s_waitcnt lgkmcnt(0)')
    a('s_barrier')
    AF = 16
    for mt in range(2):
        for ks in range(2):
            for u in range(2):
                a(f'ds_read_b64_tr_b16 {vr(AF + 8*mt + 4*ks + 2*u, 2)}, v6 offset:{ks*3072 + u*1536 + mt*64}')
    twiddles(a, 2048, 32, TR, TI, 4, 5, 8)
    a('s_waitcnt lgkmcnt(0)')
    for mt in range(2):
        for ks in range(2):
            a(mf(YR + 16*mt, AF + 8*mt + 4*ks, C32 + 4*ks, ks == 0))
            a(mf(YI + 16*mt, AF + 8*mt + 4*ks, S32 + 4*ks, ks == 0))
    a('s_nop 15')
    a(f'v_pk_add_f32 v[8:9], {vr(YR,2)}, {vr(YR+2,2)}')
    for x in range(4, 32, 2):
        a(f'v_pk_add_f32 v[8:9], v[8:9], {vr(YR+x,2)}')
    a('v_sub_f32 v8, v8, v9')
    PR = 16; PI = 32; NI = 48
    for x in range(0, 32, 2):
        t = TMP + (x & 2) * 2
        a(f'v_pk_mul_f32 {vr(t,2)}, {vr(YR+x,2)}, {vr(TR+x,2)}')
        a(f'v_pk_mul_f32 {vr(t+2,2)}, {vr(YR+x,2)}, {vr(TI+x,2)}')
        a(f'v_pk_fma_f32 {vr(t,2)}, {vr(YI+x,2)}, {vr(TI+x,2)}, {vr(t,2)} neg_lo:[1,0,0] neg_hi:[1,0,0]')
        a(f'v_pk_fma_f32 {vr(t+2,2)}, {vr(YI+x,2)}, {vr(TR+x,2)}, {vr(t+2,2)}')
        a(f'v_cvt_pk_f16_f32 v{PR+x//2}, v{t}, v{t+1}')
        a(f'v_cvt_pk_f16_f32 v{PI+x//2}, v{t+2}, v{t+3}')
        a(f'v_cvt_pk_f16_f32 v{NI+x//2}, -v{t+2}, -v{t+3}')
    a('v_readlane_b32 s16, v8, 0')
    a('v_readlane_b32 s17, v8, 32')
    ZR = YR; ZI = YI
    a('s_nop 1')
    for ks in range(4):
        a(mf(ZR, PR + 4*ks, C64 + 4*ks, ks == 0))
        a(mf(ZI, PR + 4*ks, S64 + 4*ks, ks == 0))
        a(mf(ZR, NI + 4*ks, S64 + 4*ks, False))
        a(mf(ZI, PI + 4*ks, C64 + 4*ks, False))
    a('v_mov_b32 v8, s16')
    a('v_add_f32 v8, s17, v8')
    a(f'v_mul_f32 v8, {f32(1.0/16)}, v8')
    P0 = 24576
    a('v_and_b32 v6, 31, v0')
    a('v_mul_u32_u24 v6, 144, v6')
    a('v_lshrrev_b32 v7, 5, v0')
    a('v_lshl_add_u32 v6, v7, 4, v6')
    a('s_mul_i32 s16, s3, 4608')
    a(f's_add_u32 s16, s16, {P0}')
    a('v_add_u32 v6, s16, v6')
    a('v_lshrrev_b32 v7, 5, v1')
    a('v_mul_u32_u24 v7, 144, v7')
    a('v_and_b32 v9, 31, v1')
    a('v_lshl_add_u32 v7, v9, 2, v7')
    a('v_lshrrev_b32 v9, 3, v1')
    a('v_lshlrev_b32 v9, 15, v9')
    a('v_and_b32 v10, 7, v1')
    a('v_lshl_add_u32 v9, v10, 4, v9')
    a('s_lshl_b32 s16, s2, 7')
    srd(a, 8, 38, WS_V, 4 * MB)
    a('s_mov_b64 s[18:19], 1')
    a('s_nop 7')
    a(f'v_cndmask_b32 v{ZI}, v{ZI}, v8, s[18:19]')
    W = 16
    for x in range(16):
        a(f'v_cvt_pk_f16_f32 v{W+x}, v{ZR+x}, v{ZI+x}')
    for g in range(4):
        a(f'ds_write_b128 v6, {vr(W+4*g,4)} offset:{g*32}')
    a('s_waitcnt lgkmcnt(0)')
    a('s_barrier')
    O = 32
    for q in range(4):
        for e in range(4):
            a(f'ds_read_b32 v{O+4*q+e}, v7 offset:{P0 + e*4608 + q*8*144}')
    for q in range(4):
        a(f's_waitcnt lgkmcnt({12-4*q})')
        a(f'buffer_store_dwordx4 {vr(O+4*q,4)}, v9, s[8:11], s16 offen{stflag}')
        if q < 3: a(f's_add_u32 s16, s16, {MB}')
    a.place(L_end)
    a('s_endpgm')
    return names, P0 + 4 * 4608

def a2_kernel(a, stflag=''):
    names = ['a2a_kernel', 'a2b_kernel']
    body = a.label('a2_body')
    entry_stubs(a, names, body, 168)
    L_end = a.label('end')
    a('s_cmp_ge_u32 s2, 256')
    a(f's_cbranch_scc1 {L_end}')
    a(f's_load_dwordx2 s[38:39], s[0:1], {KA["ws"]}')
    a(f's_load_dwordx2 s[40:41], s[0:1], {KA["x"]}')
    a('v_lshrrev_b32 v2, 6, v0')
    a('v_and_b32 v0, 63, v0')
    a('s_nop 0')
    a('v_readfirstlane_b32 s3, v2')
    a('s_and_b32 s16, s2, 7')
    a('s_lshl_b32 s16, s16, 1')
    a('s_bfe_u32 s17, s2, 0x10003')
    a('s_add_u32 s16, s16, s17')
    a('s_and_b32 s17, s2, 0xf0')
    a('s_add_u32 s16, s16, s17')
    a('s_lshl_b32 s16, s16, 2')
    a('s_add_u32 s16, s16, s3')
    a('s_lshr_b32 s17, s16, 3')
    a('s_lshl_b32 s17, s17, 15')
    a('s_and_b32 s18, s16, 7')
    a('s_lshl_b32 s18, s18, 4')
    a('s_add_u32 s17, s17, s18')
    a('s_sub_u32 s19, 2048, s16')
    a('s_cmp_eq_u32 s16, 0')
    a('s_cselect_b32 s19, 1024, s19')
    a('s_lshl_b32 s20, s16, 11')
    a('s_lshl_b32 s21, s19, 11')
    a('v_lshlrev_b32 v1, 7, v0')
    a('v_and_b32 v2, 31, v0')
    a('v_lshlrev_b32 v2, 6, v2')
    a('v_lshrrev_b32 v3, 5, v0')
    a('v_lshl_add_u32 v2, v3, 4, v2')
    a('s_waitcnt lgkmcnt(0)')
    srd(a, 4, 38, WS_V, 4 * MB)
    GG = 16
    for k in range(4):
        a(f'buffer_load_dwordx4 {vr(GG+4*k,4)}, v1, s[4:7], s17 offen')
        if k < 3: a('s_add_u32 s17, s17, 8192')
    a(f's_add_u32 s24, s38, {WS_X2}')
    a('s_addc_u32 s25, s39, 0')
    a('s_cmp_eq_u32 s33, 0')
    a('s_cselect_b32 s8, s40, s24')
    a('s_cselect_b32 s9, s41, s25')
    a(f's_mov_b32 s10, {4*MB}')
    a('s_mov_b32 s11, 0x20000')
    X = 32
    for row in range(2):
        for gp in range(2):
            a(f'buffer_load_dwordx4 {vr(X+8*row+4*gp,4)}, v2, s[8:11], s{20+row} offen offset:{32*gp}')
    C32 = 48; S32 = 56; TR = 64; TI = 80
    P = 96; R = 112; S = 128; Q = 144
    lane_nh(a, 4, 5)
    dft_consts(a, 32, 2, C32, S32, 4, 5, 8)
    twiddles(a, 1024, 16, TR, TI, 4, 5, 8)
    a('s_mov_b32 s22, 0x05040100')
    a('s_mov_b32 s23, 0x07060302')
    AR = 160; AI = 8
    a('s_waitcnt vmcnt(4)')
    for k in range(4):
        for p in range(2):
            g = GG + 4 * k + 2 * p
            a(f'v_perm_b32 v{AR+2*k+p}, v{g+1}, v{g}, s22')
            a(f'v_perm_b32 v{AI+2*k+p}, v{g+1}, v{g}, s23')
    a('s_nop 1')
    for ks in range(2):
        a(mf(P, AR + 4*ks, C32 + 4*ks, ks == 0))
        a(mf(R, AR + 4*ks, S32 + 4*ks, ks == 0))
        a(mf(S, AI + 4*ks, C32 + 4*ks, ks == 0))
        a(mf(Q, AI + 4*ks, S32 + 4*ks, ks == 0))
    a('s_nop 15')
    T = 8
    for x in range(0, 16, 2):
        a(f'v_pk_mul_f32 {vr(T,2)}, {vr(P+x,2)}, {vr(TI+x,2)}')
        a(f'v_pk_mul_f32 {vr(T+2,2)}, {vr(Q+x,2)}, {vr(TI+x,2)}')
        a(f'v_pk_mul_f32 {vr(P+x,2)}, {vr(P+x,2)}, {vr(TR+x,2)}')
        a(f'v_pk_mul_f32 {vr(Q+x,2)}, {vr(Q+x,2)}, {vr(TR+x,2)}')
        a(f'v_pk_fma_f32 {vr(P+x,2)}, {vr(R+x,2)}, {vr(TI+x,2)}, {vr(P+x,2)} neg_lo:[1,0,0] neg_hi:[1,0,0]')
        a(f'v_pk_fma_f32 {vr(Q+x,2)}, {vr(S+x,2)}, {vr(TI+x,2)}, {vr(Q+x,2)}')
        a(f'v_pk_fma_f32 {vr(R+x,2)}, {vr(R+x,2)}, {vr(TR+x,2)}, {vr(T,2)}')
        a(f'v_pk_fma_f32 {vr(S+x,2)}, {vr(S+x,2)}, {vr(TR+x,2)}, {vr(T+2,2)} neg_lo:[0,0,1] neg_hi:[0,0,1]')
    RA = TR; NA = TR + 8; RB = TI; NB = TI + 8
    L0 = a.label('t0'); L1 = a.label('tj')
    a('s_cmp_eq_u32 s16, 0')
    a(f's_cbranch_scc1 {L0}')
    for x in range(0, 16, 2):
        a(f'v_pk_add_f32 {vr(T,2)}, {vr(P+x,2)}, {vr(Q+x,2)} neg_lo:[0,1] neg_hi:[0,1]')
        a(f'v_pk_add_f32 {vr(T+2,2)}, {vr(P+x,2)}, {vr(Q+x,2)}')
        a(f'v_pk_add_f32 {vr(T+4,2)}, {vr(R+x,2)}, {vr(S+x,2)} neg_lo:[1,1] neg_hi:[1,1]')
        a(f'v_pk_add_f32 {vr(T+6,2)}, {vr(S+x,2)}, {vr(R+x,2)} neg_lo:[0,1] neg_hi:[0,1]')
        a(f'v_cvt_pk_f16_f32 v{RA+x//2}, v{T}, v{T+1}')
        a(f'v_cvt_pk_f16_f32 v{RB+x//2}, v{T+2}, v{T+3}')
        a(f'v_cvt_pk_f16_f32 v{NA+x//2}, v{T+4}, v{T+5}')
        a(f'v_cvt_pk_f16_f32 v{NB+x//2}, v{T+6}, v{T+7}')
    a(f's_branch {L1}')
    a.place(L0)
    for x in range(0, 16, 2):
        a(f'v_cvt_pk_f16_f32 v{RA+x//2}, v{P+x}, v{P+x+1}')
        a(f'v_cvt_pk_f16_f32 v{NA+x//2}, -v{R+x}, -v{R+x+1}')
        a(f'v_cvt_pk_f16_f32 v{RB+x//2}, v{S+x}, v{S+x+1}')
        a(f'v_cvt_pk_f16_f32 v{NB+x//2}, -v{Q+x}, -v{Q+x+1}')
    a.place(L1)
    a('s_nop 1')
    YA = P; YB = R
    for ks in range(2):
        a(mf(YA, RA + 4*ks, C32 + 4*ks, ks == 0))
        a(mf(YB, RB + 4*ks, C32 + 4*ks, ks == 0))
        a(mf(YA, NA + 4*ks, S32 + 4*ks, False))
        a(mf(YB, NB + 4*ks, S32 + 4*ks, False))
    srd(a, 4, 38, WS_X1, 4 * MB)
    srd(a, 12, 38, WS_XN1, 4 * MB)
    XF = S
    a('s_waitcnt vmcnt(0)')
    for k in range(16):
        a(f'v_lshlrev_b32 v{XF+2*k}, 16, v{X+k}')
        a(f'v_and_b32 v{XF+2*k+1}, 0xffff0000, v{X+k}')
    a('v_mov_b32 v4, 16.0')
    a('v_mov_b32 v5, 16.0')
    for Y in (YA, YB):
        for gp in range(2):
            for r in range(4):
                a(f'v_permlane32_swap_b32 v{Y+8*gp+r}, v{Y+8*gp+4+r}')
    a('s_nop 1')
    for k in range(16):
        a(f'v_pk_fma_f32 {vr(P+2*k,2)}, {vr(P+2*k,2)}, v[4:5], {vr(XF+2*k,2)}')
    for k in range(16):
        a(f'v_cvt_pk_bf16_f32 v{X+k}, v{P+2*k}, v{P+2*k+1}')
    for row in range(2):
        for gp in range(2):
            a(f'buffer_store_dwordx4 {vr(X+8*row+4*gp,4)}, v2, s[4:7], s{20+row} offen offset:{32*gp}{stflag}')
    for k in range(16):
        a(f'v_lshlrev_b32 v{XF+2*k}, 16, v{X+k}')
        a(f'v_and_b32 v{XF+2*k+1}, 0xffff0000, v{X+k}')
    for row in range(2):
        m = 8 + 2 * row
        a(f'v_pk_add_f32 {vr(m,2)}, {vr(XF+16*row,2)}, {vr(XF+16*row+2,2)}')
    for k in range(2, 8):
        for row in range(2):
            m = 8 + 2 * row
            a(f'v_pk_add_f32 {vr(m,2)}, {vr(m,2)}, {vr(XF+16*row+2*k,2)}')
    a('v_add_f32 v8, v8, v9')
    a('v_add_f32 v10, v10, v11')
    wave_sum(a, [8, 10], [9, 11])
    a(f'v_mul_f32 v8, {f32(-1.0/1024)}, v8')
    a(f'v_mul_f32 v10, {f32(-1.0/1024)}, v10')
    for k in range(8):
        for row in range(2):
            m = 8 + 2 * row
            a(f'v_pk_add_f32 {vr(XF+16*row+2*k,2)}, {vr(XF+16*row+2*k,2)}, {vr(m,2)} op_sel_hi:[1,0]')
    for row in range(2):
        m = 12 + 2 * row
        a(f'v_pk_mul_f32 {vr(m,2)}, {vr(XF+16*row,2)}, {vr(XF+16*row,2)}')
    for k in range(1, 8):
        for row in range(2):
            m = 12 + 2 * row
            a(f'v_pk_fma_f32 {vr(m,2)}, {vr(XF+16*row+2*k,2)}, {vr(XF+16*row+2*k,2)}, {vr(m,2)}')
    a('v_add_f32 v12, v12, v13')
    a('v_add_f32 v14, v14, v15')
    wave_sum(a, [12, 14], [13, 15])
    a(f'v_mov_b32 v6, {f32(1e-5)}')
    a(f'v_fmamk_f32 v12, v12, {f32(1.0/1024)}, v6')
    a(f'v_fmamk_f32 v14, v14, {f32(1.0/1024)}, v6')
    a('v_rsq_f32 v12, v12')
    a('v_rsq_f32 v14, v14')
    a('s_nop 0')
    for k in range(8):
        for row in range(2):
            m = 12 + 2 * row
            a(f'v_pk_mul_f32 {vr(XF+16*row+2*k,2)}, {vr(XF+16*row+2*k,2)}, {vr(m,2)} op_sel_hi:[1,0]')
    for k in range(16):
        a(f'v_cvt_pk_bf16_f32 v{GG+k}, v{XF+2*k}, v{XF+2*k+1}')
    for row in range(2):
        for gp in range(2):
            a(f'buffer_store_dwordx4 {vr(GG+8*row+4*gp,4)}, v2, s[12:15], s{20+row} offen offset:{32*gp}{stflag}')
    a.place(L_end)
    a('s_endpgm')
    return names

def pre_kernel(a, stflag=''):
    name = 'pre_kernel'
    a.begin_kernel(name)
    L_end = a.label('end')
    a('s_cmp_ge_u32 s2, 256')
    a(f's_cbranch_scc1 {L_end}')
    a(f's_load_dwordx2 s[38:39], s[0:1], {KA["ws"]}')
    a(f's_load_dwordx2 s[40:41], s[0:1], {KA["x"]}')
    a('v_mov_b32 v1, v0')
    a('v_lshrrev_b32 v2, 6, v0')
    a('v_and_b32 v0, 63, v0')
    a('v_readfirstlane_b32 s3, v2')
    RS = 288
    a('s_lshr_b32 s16, s2, 3')
    a('s_and_b32 s17, s2, 7')
    a('s_lshl_b32 s18, s16, 17')
    a('s_lshl_b32 s19, s17, 8')
    a('s_add_u32 s18, s18, s19')
    a('v_lshrrev_b32 v2, 4, v1')
    a('v_and_b32 v3, 15, v1')
    a('v_lshlrev_b32 v4, 11, v2')
    a('v_lshl_add_u32 v4, v3, 4, v4')
    a(f'v_mul_u32_u24 v5, {RS}, v2')
    a('v_lshl_add_u32 v5, v3, 4, v5')
    a('s_lshl_b32 s20, s2, 2')
    a('s_add_u32 s20, s20, s3')
    a('s_lshl_b32 s21, s20, 12')
    a('v_lshlrev_b32 v6, 4, v0')
    a('s_waitcnt lgkmcnt(0)')
    srd(a, 4, 40, 0, 4 * MB)
    for k in range(4):
        a(f'buffer_load_dwordx4 {vr(16+4*k,4)}, v4, s[4:7], s18 offen')
        if k < 3: a('s_add_u32 s18, s18, 32768')
    for k in range(4):
        a(f'buffer_load_dwordx4 {vr(32+4*k,4)}, v6, s[4:7], s21 offen offset:{1024*k}')
    srd(a, 8, 38, WS_ST, 65536)
    for r in range(4):
        a(f'v_mov_b32 v{8+r}, 0')
    a('s_mul_i32 s22, s2, 192')
    a('s_add_u32 s22, s22, 16384')
    a('v_lshlrev_b32 v7, 4, v1')
    a('v_cmp_gt_u32 vcc, 12, v1')
    a('v_mov_b32 v12, 0x7fffff00')
    a('s_nop 0')
    a('v_cndmask_b32 v7, v12, v7, vcc')
    a(f'buffer_store_dwordx4 v[8:11], v7, s[8:11], s22 offen{stflag}')
    for k in range(4):
        a(f's_waitcnt vmcnt({8-k})')
        a(f'ds_write_b128 v5, {vr(16+4*k,4)} offset:{16*k*RS}')
    a('v_bfe_u32 v2, v0, 2, 2')
    a('v_lshrrev_b32 v3, 4, v0')
    a('v_lshl_add_u32 v2, v3, 3, v2')
    a(f'v_mul_u32_u24 v2, {RS}, v2')
    a('v_and_b32 v4, 3, v0')
    a('v_lshl_add_u32 v2, v4, 3, v2')
    a('s_lshl_b32 s22, s3, 6')
    a('v_add_u32 v2, s22, v2')
    a('v_and_b32 v4, 15, v0')
    a('v_lshlrev_b32 v4, 12, v4')
    a('v_lshl_add_u32 v4, v3, 4, v4')
    a('s_lshl_b32 s22, s17, 19')
    a('s_lshl_b32 s23, s3, 17')
    a('s_add_u32 s22, s22, s23')
    a('s_lshl_b32 s23, s16, 7')
    a('s_add_u32 s22, s22, s23')
    a('s_add_u32 s23, s22, 65536')
    srd(a, 12, 38, WS_XT, 4 * MB)
    a('s_waitcnt lgkmcnt(0)')
    a('s_barrier')
    for ct in range(2):
        for sh in range(2):
            for u in range(2):
                a(f'ds_read_b64_tr_b16 {vr(16 + 8*ct + 4*sh + 2*u, 2)}, v2 offset:{(32*sh + 4*u)*RS + ct*32}')
    a('s_waitcnt vmcnt(1)')
    XF = 48
    for k in range(16):
        a(f'v_lshlrev_b32 v{XF+2*k}, 16, v{32+k}')
        a(f'v_and_b32 v{XF+2*k+1}, 0xffff0000, v{32+k}')
    for ct in range(2):
        for sh in range(2):
            a(f's_waitcnt lgkmcnt({6 - 4*ct - 2*sh})')
            a(f'buffer_store_dwordx4 {vr(16+8*ct+4*sh,4)}, v4, s[12:15], s{22+ct} offen offset:{64*sh}{stflag}')
    for row in range(2):
        a(f'v_pk_add_f32 {vr(32+4*row,2)}, {vr(XF+16*row,2)}, {vr(XF+16*row+2,2)}')
        a(f'v_pk_mul_f32 {vr(34+4*row,2)}, {vr(XF+16*row,2)}, {vr(XF+16*row,2)}')
    for k in range(1, 8):
        for row in range(2):
            if k > 1:
                a(f'v_pk_add_f32 {vr(32+4*row,2)}, {vr(32+4*row,2)}, {vr(XF+16*row+2*k,2)}')
            a(f'v_pk_fma_f32 {vr(34+4*row,2)}, {vr(XF+16*row+2*k,2)}, {vr(XF+16*row+2*k,2)}, {vr(34+4*row,2)}')
    for k in range(4):
        a(f'v_add_f32 v{40+k}, v{32+2*k}, v{32+2*k+1}')
    wave_sum(a, [40, 41, 42, 43], [44, 45, 46, 47])
    a('s_lshl_b32 s22, s20, 4')
    a('v_cmp_eq_u32 vcc, 0, v0')
    a('s_nop 1')
    a('v_cndmask_b32 v7, v12, v0, vcc')
    a(f'buffer_store_dwordx4 v[40:43], v7, s[8:11], s22 offen{stflag}')
    a.place(L_end)
    a('s_endpgm')
    a.end_kernel(name, 80, 96)
    return name, 64 * RS

def n2_kernel(a, stflag=''):
    names = ['n2a_kernel', 'n2b_kernel']
    body = a.label('n2_body')
    entry_stubs(a, names, body, 80)
    L_end = a.label('end')
    a('s_cmp_ge_u32 s2, 256')
    a(f's_cbranch_scc1 {L_end}')
    a(f's_load_dwordx2 s[38:39], s[0:1], {KA["ws"]}')
    a('v_lshlrev_b32 v2, 6, v0')
    a('v_lshlrev_b32 v3, 4, v0')
    a('s_lshl_b32 s25, s33, 14')
    a(f's_add_u32 s25, s25, {WS_ST + 2*16384}')
    a(f's_mul_i32 s16, s2, {7*4096}')
    a('s_mov_b32 s17, s16')
    a('s_waitcnt lgkmcnt(0)')
    srd(a, 4, 38, 's25', 16384)
    srd(a, 8, 38, WS_ZT + 1792 * 4096, 1792 * 4096)
    ST = 4; XD = 20; SC = 48; TMP = 64
    for q in range(4):
        a(f'buffer_load_dwordx4 {vr(ST+4*q,4)}, v2, s[4:7], 0 offen offset:{16*q}')
    for e in range(7):
        a(f'buffer_load_dwordx4 {vr(XD+4*e,4)}, v3, s[8:11], s16 offen')
        a('s_add_u32 s16, s16, 4096')
    a('s_waitcnt vmcnt(7)')
    scale_shift(a, ST, SC, 1792)
    for e in range(7):
        a('s_waitcnt vmcnt(6)')
        for d in range(4):
            a(f'v_lshlrev_b32 v{TMP+2*d}, 16, v{XD+4*e+d}')
            a(f'v_and_b32 v{TMP+2*d+1}, 0xffff0000, v{XD+4*e+d}')
        for d in range(4):
            a(f'v_pk_fma_f32 {vr(TMP+2*d,2)}, {vr(TMP+2*d,2)}, {vr(SC+2*d,2)}, {vr(SC+8+2*d,2)}')
        for d in range(4):
            a(f'v_cvt_pk_bf16_f32 v{XD+4*e+d}, v{TMP+2*d}, v{TMP+2*d+1}')
        a(f'buffer_store_dwordx4 {vr(XD+4*e,4)}, v3, s[8:11], s17 offen{stflag}')
        a('s_add_u32 s17, s17, 4096')
    a.place(L_end)
    a('s_endpgm')
    return names
```

```python
from asmlib import *
import struct
MB = 1 << 20
WS_XT = 0; WS_V = 4*MB; WS_X1 = 8*MB; WS_XN1 = 12*MB; WS_ZT = 16*MB; WS_HT = 32*MB; WS_X2 = 40*MB
WS_ST = 44*MB
WS_SIZE = 256*MB
def f32(x): return struct.unpack('<I', struct.pack('<f', x))[0]
lg = lambda v: v.bit_length() - 1

class G:
    def __init__(self, **kw):
        self.flags = set()
        self.__dict__.update(kw)
        self.nst = self.K // 64
        self.NT = (self.BN // 16) if self.ksplit == 2 else (self.BN // 32)
        self.SPS = 1 if self.ksplit == 2 else 2
        self.nBp = self.BN * 128 // 1024
        self.nBw = (self.nBp + 3) // 4
        self.bbytes = self.nBp * 1024 if self.bmode == 'kcnorm' else self.nBw * 4096
        self.stage = 16384 + self.bbytes
        self.NS = 3
        self.lds = self.stage * 3 + (16384 if self.bmode == 'kcnorm' else 0)
        self.tab = self.stage * 3

def entry_stubs(a, names, body, vgpr, sgpr=96):
    for i, n in enumerate(names):
        a.begin_kernel(n)
        a(f's_mov_b32 s33, {i}')
        if i != len(names) - 1:
            a(f's_branch {body}')
        a.end_kernel(n, vgpr, sgpr)
    a.place(body)

def srd(a, d, base_lo, off_sreg_or_imm, nbytes):
    a(f's_add_u32 s{d}, s{base_lo}, {off_sreg_or_imm}')
    a(f's_addc_u32 s{d+1}, s{base_lo+1}, 0')
    a(f's_mov_b32 s{d+2}, {nbytes}')
    a(f's_mov_b32 s{d+3}, 0x20000')

def gemm_kernel(a, c, epi):
    NT = c.NT; NS = 3
    body = a.label(c.name + '_body')
    entry_stubs(a, c.names, body, 256)
    L_end = a.label('end'); L_prod = a.label('prod')
    a('s_cmp_ge_u32 s2, 256')
    a(f's_cbranch_scc1 {L_end}')
    a(f's_load_dwordx2 s[34:35], s[0:1], {KA[c.a_src[0]]}')
    a(f's_load_dwordx2 s[36:37], s[0:1], {KA[c.b_src[0]]}')
    a(f's_load_dwordx2 s[38:39], s[0:1], {KA["ws"]}')
    epi.loads(a, c)
    nxm = 16 // c.xm
    a('s_and_b32 s18, s2, 7')
    a('s_lshr_b32 s19, s2, 3')
    a(f's_and_b32 s16, s18, {nxm-1}')
    a(f's_lshl_b32 s16, s16, {lg(c.xm)}')
    a(f's_and_b32 s20, s19, {c.xm-1}')
    a('s_add_u32 s16, s16, s20')
    a(f's_lshr_b32 s17, s18, {lg(nxm)}')
    a(f's_lshl_b32 s17, s17, {lg(c.xn)}')
    a(f's_lshr_b32 s20, s19, {lg(c.xm)}')
    a('s_add_u32 s17, s17, s20')
    a(f's_mov_b32 s31, {(-(NS-1)*c.stage) & 0xffffffff}')
    a('v_lshrrev_b32 v1, 6, v0')
    a('v_and_b32 v0, 63, v0')
    a('s_nop 0')
    a('v_readfirstlane_b32 s3, v1')
    a('s_nop 3')
    a('s_cmp_ge_u32 s3, 4')
    a(f's_cbranch_scc1 {L_prod}')

    FS = 16 + 4 * NT
    V0 = 16
    FA = lambda s, i: V0 + s * FS + 4 * i
    FB = lambda s, j: V0 + s * FS + 16 + 4 * j
    ACC0 = V0 + 2 * FS
    ACC = lambda i, j: ACC0 + 4 * (i * NT + j)
    c.ACC = ACC; c.ACC0 = ACC0; c.VTOP = ACC0 + 16 * NT; c.V0 = V0; c.FS = FS
    a('s_and_b32 s21, s3, 1')
    a('s_lshr_b32 s22, s3, 1')
    epi.cons_pre(a, c)
    a('v_and_b32 v1, 15, v0')
    a('v_lshrrev_b32 v2, 4, v0')
    addr = []
    a('v_lshrrev_b32 v3, 1, v1')
    a('v_xor_b32 v3, v2, v3')
    a('v_lshlrev_b32 v3, 4, v3')
    a('v_lshl_add_u32 v3, v1, 7, v3')
    if c.ksplit == 2:
        a('s_lshl_b32 s24, s22, 6')
        a('v_xor_b32 v3, s24, v3')
    if c.amode == 'kc':
        a('s_lshl_b32 s23, s21, 13')
        if c.ksplit == 2:
            a('s_lshl_b32 s24, s22, 12')
            a('s_add_u32 s25, s23, s24')
            a('s_xor_b32 s26, s25, 4096')
            a('v_add_u32 v4, s25, v3')
            a('v_add_u32 v5, s26, v3')
            aread = lambda s, i, h: [f'ds_read_b128 {vr(FA(s, i), 4)}, v{4 + (i >> 1)} offset:{(i & 1)*2048}']
        else:
            a('v_add_u32 v4, s23, v3')
            a('v_xor_b32 v5, 64, v4')
            aread = lambda s, i, h: [f'ds_read_b128 {vr(FA(s, i), 4)}, v{4 + h} offset:{i*2048}']
        addr += [4, 5]
    else:
        assert c.ksplit == 2
        a('v_bfe_u32 v8, v0, 2, 2')
        a('v_lshl_add_u32 v9, v2, 3, v8')
        a('v_lshlrev_b32 v9, 8, v9')
        a('v_and_b32 v10, 3, v0')
        a('v_lshl_add_u32 v9, v10, 3, v9')
        a('s_lshl_b32 s24, s22, 13')
        a('v_add_u32 v9, s24, v9')
        a('v_bfe_u32 v10, v0, 4, 1')
        a('v_lshl_add_u32 v8, v10, 2, v8')
        a('s_lshl_b32 s24, s21, 2')
        a('s_lshl_b32 s25, s22, 1')
        a('s_add_u32 s24, s24, s25')
        a('v_xor_b32 v8, s24, v8')
        for i in range(4):
            a(f'v_xor_b32 v10, {i}, v8')
            a(f'v_lshl_add_u32 v{4+i}, v10, 5, v9')
        aread = lambda s, i, h: [f'ds_read_b64_tr_b16 {vr(FA(s, i) + 2*u, 2)}, v{4+i} offset:{u*1024}' for u in range(2)]
        addr += [4, 5, 6, 7]
    if c.bmode in ('kc', 'kcnorm'):
        assert c.ksplit == 2
        a('v_add_u32 v11, 16384, v3')
        bread = lambda s, j, h: [f'ds_read_b128 {vr(FB(s, j), 4)}, v11 offset:{j*2048}']
        addr += [11]
    else:
        CPR = c.BN // 8
        a('v_bfe_u32 v8, v0, 2, 2')
        a('v_lshl_add_u32 v8, v2, 3, v8')
        a(f'v_mul_u32_u24 v8, {CPR*16}, v8')
        a('v_and_b32 v9, 3, v0')
        a('v_lshl_add_u32 v8, v9, 3, v8')
        a('v_add_u32 v8, 16384, v8')
        if CPR == 28:
            assert c.ksplit == 1
            a('s_mul_i32 s24, s22, 224')
            a('v_add_u32 v8, s24, v8')
            a('v_and_b32 v9, 1, v2')
            a('v_lshlrev_b32 v9, 5, v9')
            a('v_add_u32 v10, v8, v9')
            a('v_sub_u32 v9, v8, v9')
            a('s_cmp_eq_u32 s22, 0')
            a('s_cselect_b64 s[26:27], -1, 0')
            a('v_cndmask_b32 v11, v9, v10, s[26:27]')
            a('v_cndmask_b32 v12, v10, v9, s[26:27]')
            bread = lambda s, j, h: [f'ds_read_b64_tr_b16 {vr(FB(s, j) + 2*u, 2)}, v{11 + (j & 1)} offset:{(32*h + 4*u)*CPR*16 + j*32}' for u in range(2)]
            addr += [11, 12]
        else:
            assert CPR == 8 and c.ksplit == 2
            a(f's_mul_i32 s25, s22, {32*CPR*16}')
            a('v_add_u32 v8, s25, v8')
            a('v_bfe_u32 v9, v0, 3, 1')
            a('v_bfe_u32 v10, v0, 4, 1')
            a('v_lshl_add_u32 v9, v10, 1, v9')
            for j in range(4):
                a(f'v_xor_b32 v10, {j}, v9')
                a(f'v_lshl_add_u32 v{11+j}, v10, 5, v8')
            bread = lambda s, j, h: [f'ds_read_b64_tr_b16 {vr(FB(s, j) + 2*u, 2)}, v{11+j} offset:{4*u*CPR*16}' for u in range(2)]
            addr += [11, 12, 13, 14]
    def reads(s, h):
        r = aread(s, 0, h)
        for j in range(NT):
            r += bread(s, j, h)
            if j == 0:
                for i in range(1, 4):
                    r += aread(s, i, h)
        return r
    def mfmas(s):
        m = []
        for i in range(4):
            for j in range(NT):
                x, y = (FB(s, j), FA(s, i)) if c.swap else (FA(s, i), FB(s, j))
                m.append(f'v_mfma_f32_16x16x32_bf16 {vr(ACC(i, j), 4)}, {vr(x, 4)}, {vr(y, 4)}, {vr(ACC(i, j), 4)}')
        return m
    def interleave(ms, rs):
        rs = list(rs)
        if 'no_mfma' in c.flags: ms = []
        if 'no_reads' in c.flags: rs = [r for r in rs if not r.startswith('ds_')]
        per = max(1, -(-len(rs) // max(1, len(ms) - 4)))
        for k, m in enumerate(ms):
            a(m)
            for _ in range(per):
                if rs:
                    a(rs.pop(0))
        for r in rs:
            a(r)
    for r in range(ACC0, ACC0 + 16 * NT):
        a(f'v_mov_b32 v{r}, 0')
    epi.cons_pre2(a, c)
    def advance():
        r = ['s_add_u32 s28, s28, 1',
             f's_cmp_eq_u32 s28, {NS}',
             f's_cselect_b32 s29, s31, {c.stage}',
             's_cselect_b32 s28, 0, s28']
        for v in addr:
            r.append(f'v_add_u32 v{v}, s29, v{v}')
        return r
    a('s_mov_b32 s28, 0')
    a('s_barrier')
    for r in reads(0, 0):
        a(r)
    if c.SPS == 1:
        for x in advance():
            a(x)
    T = c.nst * c.SPS
    npair = T // 2
    L_loop = a.label('cloop')
    a(f's_mov_b32 s30, {npair - 1}')
    def substep(s, h_next, last_in_stage, adv_after, do_reads=True):
        a('s_waitcnt lgkmcnt(0)')
        if last_in_stage:
            a('s_barrier')
        rs = reads(1 - s, h_next) if do_reads else []
        if adv_after and do_reads:
            rs = rs + advance()
        interleave(mfmas(s), rs)
    def pair(final):
        if c.SPS == 2:
            substep(0, 1, False, True)
            substep(1, 0, True, False, do_reads=not final)
        else:
            substep(0, 0, True, True)
            substep(1, 0, True, True, do_reads=not final)
    a('.p2align 6')
    a.place(L_loop)
    pair(False)
    a('s_sub_u32 s30, s30, 1')
    a('s_cmp_lg_u32 s30, 0')
    a(f's_cbranch_scc1 {L_loop}')
    pair(True)
    if 'no_epi' not in c.flags:
        epi.consumer(a, c)
    a('s_endpgm')

    a('.p2align 6')
    a.place(L_prod)
    a('s_sub_u32 s3, s3, 4')
    if 'pprio' in c.flags: a('s_setprio 3')
    VA = 8; VB = 12
    def kc_lane(swz):
        a('v_lshrrev_b32 v1, 3, v0')
        a('s_lshl_b32 s20, s3, 3')
        a('v_add_u32 v1, s20, v1')
        a('v_and_b32 v2, 7, v0')
        a('v_lshrrev_b32 v3, 4, v0')
        a('v_xor_b32 v3, v2, v3')
        a('s_and_b32 s20, s3, 1')
        a('s_lshl_b32 s20, s20, 2')
        a('v_xor_b32 v3, s20, v3')
        a('v_lshlrev_b32 v3, 4, v3')
        a('v_lshlrev_b32 v2, 4, v2')
    kc_lane(True)
    if c.amode == 'kc':
        a(f's_mov_b32 s20, {c.lda}')
        a('v_mul_lo_u32 v4, v1, s20')
        a(f'v_add_u32 v{VA}, v4, v3')
        for p in range(1, 4):
            a(f'v_add_u32 v{VA+p}, {32*p*c.lda}, v{VA}')
        ka_step = 128; atile = 128 * c.lda
    else:
        a('v_lshrrev_b32 v4, 4, v0')
        a('s_lshl_b32 s20, s3, 2')
        a('v_add_u32 v5, s20, v4')
        a(f's_mov_b32 s20, {c.lda}')
        a('v_mul_lo_u32 v5, v5, s20')
        a('s_lshr_b32 s20, s3, 1')
        a('s_lshl_b32 s20, s20, 2')
        a('v_or_b32 v4, s20, v4')
        a('v_lshlrev_b32 v4, 1, v4')
        a('v_and_b32 v6, 15, v0')
        a('v_xor_b32 v4, v4, v6')
        a(f'v_lshl_add_u32 v{VA}, v4, 4, v5')
        for p in range(1, 4):
            a(f'v_add_u32 v{VA+p}, {16*p*c.lda}, v{VA}')
        ka_step = 64 * c.lda; atile = 256
    if c.bmode in ('kc', 'kcnorm'):
        a(f's_mov_b32 s20, {c.ldb}')
        a('v_mul_lo_u32 v4, v1, s20')
        a(f'v_add_u32 v{VB}, v4, {"v2" if c.bmode == "kcnorm" else "v3"}')
        for p in range(1, c.nBw):
            a(f'v_add_u32 v{VB+p}, {32*p*c.ldb}, v{VB}')
        if c.nBp % 4:
            a(f's_cmp_ge_u32 s3, {c.nBp % 4}')
            a('s_cselect_b64 s[26:27], -1, 0')
            a('v_mov_b32 v4, 0x7fffff00')
            a(f'v_cndmask_b32 v{VB+c.nBw-1}, v{VB+c.nBw-1}, v4, s[26:27]')
        kb_step = 128; btile = c.BN * c.ldb
        if c.bmode == 'kcnorm':
            a('v_lshl_add_u32 v20, v1, 7, v3')
            a('v_add_u32 v20, 16384, v20')
            a('v_lshlrev_b32 v21, 2, v2')
            a(f'v_add_u32 v21, {c.tab}, v21')
    else:
        CPR = c.BN // 8
        a('s_lshl_b32 s20, s3, 6')
        a('v_add_u32 v1, s20, v0')
        a(f's_mov_b32 s21, {c.ldb}')
        for b in range(c.nBw):
            a(f'v_add_u32 v2, {256*b}, v1')
            if CPR == 28:
                a('v_mul_u32_u24 v3, 2341, v2')
                a('v_lshrrev_b32 v3, 16, v3')
                a('v_mul_u32_u24 v4, 28, v3')
                a('v_sub_u32 v4, v2, v4')
                a('v_bfe_u32 v5, v3, 3, 1')
                a('v_lshlrev_b32 v5, 1, v5')
                a('v_xor_b32 v4, v4, v5')
            else:
                a('v_lshrrev_b32 v3, 3, v2')
                a('v_and_b32 v4, 7, v2')
                a('v_bfe_u32 v5, v3, 1, 1')
                a('v_bfe_u32 v6, v3, 3, 1')
                a('v_lshl_add_u32 v5, v6, 1, v5')
                a('v_lshlrev_b32 v5, 1, v5')
                a('v_xor_b32 v4, v4, v5')
            a('v_mul_lo_u32 v3, v3, s21')
            a(f'v_lshl_add_u32 v{VB+b}, v4, 4, v3')
        kb_step = 64 * c.ldb; btile = c.BN * 2
    a(f's_mul_i32 s20, s16, {atile}')
    a(f's_sub_u32 s6, {c.a_bytes}, s20')
    a(f's_add_u32 s20, s20, {c.a_src[1]}')
    a(f's_mul_i32 s21, s17, {btile}')
    a(f's_sub_u32 s10, {c.b_bytes}, s21')
    a(f's_add_u32 s21, s21, {c.b_src[1]}')
    a('s_mov_b32 s7, 0x20000')
    a('s_mov_b32 s11, 0x20000')
    a('s_lshl_b32 s24, s3, 10')
    a('s_mov_b32 s22, 0')
    a('s_mov_b32 s23, 0')
    a('s_mov_b32 s28, 0')
    a('s_waitcnt lgkmcnt(0)')
    a('s_add_u32 s4, s34, s20')
    a('s_addc_u32 s5, s35, 0')
    a('s_add_u32 s8, s36, s21')
    a('s_addc_u32 s9, s37, 0')
    def dmaA(p):
        return [f's_add_u32 m0, s24, {p*4096}', 's_nop 0', f'buffer_load_dwordx4 v{VA+p}, s[4:7], s22 offen lds']
    def dmaB(p):
        return [f's_add_u32 m0, s24, {16384 + p*4096}', 's_nop 0', f'buffer_load_dwordx4 v{VB+p}, s[8:11], s23 offen lds']
    def slot_adv():
        return ['s_add_u32 s28, s28, 1', f's_cmp_eq_u32 s28, {NS}', f's_cselect_b32 s29, s31, {c.stage}',
                's_cselect_b32 s28, 0, s28', 's_add_u32 s24, s24, s29']
    if c.bmode != 'kcnorm':
        npc = 4 + c.nBw
        Lp = a.label('ploop')
        a(f's_mov_b32 s30, {c.nst}')
        a.place(Lp)
        if 'no_dma' not in c.flags:
            for p in range(max(4, c.nBw)):
                if p < 4:
                    for x in dmaA(p): a(x)
                if p < c.nBw:
                    for x in dmaB(p): a(x)
        a(f's_add_u32 s22, s22, {ka_step}')
        a(f's_add_u32 s23, s23, {kb_step}')
        for x in slot_adv(): a(x)
        a('s_sub_u32 s30, s30, 1')
        a(f's_cmp_eq_u32 s30, {c.nst - 1}')
        a(f's_cbranch_scc1 {Lp}')
        a(f's_waitcnt vmcnt({npc})')
        a('s_barrier')
        a('s_cmp_lg_u32 s30, 0')
        a(f's_cbranch_scc1 {Lp}')
        a('s_waitcnt vmcnt(0)')
        a('s_barrier')
        a('s_barrier')
    else:
        R = lambda k: 32 + 16 * (k % 3)
        SC = 80; TMP = 96
        def ldB(k):
            return [[f'buffer_load_dwordx4 {vr(R(k) + 4*p, 4)}, v{VB+p}, s[8:11], s23 offen'] for p in range(4)] + [[f's_add_u32 s23, s23, {kb_step}']]
        def ldA():
            return [dmaA(p) for p in range(4)] + [[f's_add_u32 s22, s22, {ka_step}'] + slot_adv()]
        def tabrd():
            return [f'ds_read_b128 {vr(SC + 4*q, 4)}, v21 offset:{16*q}' for q in range(4)] + ['v_add_u32 v21, 512, v21']
        def norm(k, slot):
            gs = []
            for p in range(4):
                g = []
                for d in range(4):
                    src = R(k) + 4*p + d
                    t = TMP + 2 * d
                    g += [f'v_lshlrev_b32 v{t}, 16, v{src}', f'v_and_b32 v{t+1}, 0xffff0000, v{src}']
                for d in range(4):
                    t = TMP + 2 * d
                    if 'nopk' in c.flags:
                        g += [f'v_fma_f32 v{t}, v{t}, v{SC+2*d}, v{SC+8+2*d}', f'v_fma_f32 v{t+1}, v{t+1}, v{SC+2*d+1}, v{SC+8+2*d+1}']
                    else:
                        g += [f'v_pk_fma_f32 {vr(t, 2)}, {vr(t, 2)}, {vr(SC + 2*d, 2)}, {vr(SC + 8 + 2*d, 2)}']
                for d in range(4):
                    t = TMP + 2 * d
                    g += [f'v_cvt_pk_bf16_f32 v{R(k) + 4*p + d}, v{t}, v{t+1}']
                if p < 3:
                    g += [f'ds_write_b128 v{22+slot}, {vr(R(k) + 4*p, 4)} offset:{p*4096}']
                else:
                    g += [f'ds_write_b128 v{25+slot}, {vr(R(k) + 4*p, 4)}']
                gs.append(g)
            return gs
        for sl in range(3):
            a(f'v_add_u32 v{22+sl}, {sl*c.stage}, v20')
            a(f'v_add_u32 v{25+sl}, {sl*c.stage + 3*4096}, v20')
        a('v_lshlrev_b32 v4, 4, v0')
        a(f'v_add_u32 v4, {c.tab + 16384}, v4')
        for sl in range(3):
            a(f'v_cndmask_b32 v{25+sl}, v{25+sl}, v4, s[26:27]')
        c.lds += 1024
        flat = lambda gs: [x for g in gs for x in g]
        for x in flat(ldB(0)) + flat(ldA()) + flat(ldB(1)) + flat(ldA()) + flat(ldB(2)):
            a(x)
        a('s_barrier')
        for x in tabrd(): a(x)
        a('s_waitcnt vmcnt(16) lgkmcnt(0)')
        for x in flat(norm(0, 0)): a(x)
        for x in tabrd(): a(x)
        a('s_waitcnt vmcnt(8) lgkmcnt(0)')
        a('s_barrier')
        def iteration(i, doA, doB, wait):
            mem = (ldA() if doA else []) + (ldB(i + 3) if doB else [])
            ng = norm(i + 1, (i + 1) % 3)
            k = 0
            while mem or ng:
                for _ in range(2):
                    if mem:
                        for x in mem.pop(0): a(x)
                if ng:
                    for x in ng.pop(0): a(x)
            for x in tabrd(): a(x)
            a(f's_waitcnt vmcnt({wait}) lgkmcnt(0)')
            a('s_barrier')
        nfull = c.nst - 3
        nloop = nfull // 3
        Lp = a.label('ploop')
        a(f's_mov_b32 s30, {nloop}')
        a.place(Lp)
        for i in range(3):
            iteration(i, True, True, 8)
        a('s_sub_u32 s30, s30, 1')
        a('s_cmp_lg_u32 s30, 0')
        a(f's_cbranch_scc1 {Lp}')
        for i in range(nloop * 3, c.nst - 1):
            doA = i + 2 < c.nst; doB = i + 3 < c.nst
            iteration(i, doA, doB, 4 * doA + 4 * doB)
        a('s_barrier')
    a.place(L_end)
    a('s_endpgm')
```

```python
import sys
from epis import *
from fft import *
def build(path, st=' sc1', extra_empty=0):
    a = Asm()
    pre, pre_lds = pre_kernel(a, st)
    a1, a1_lds = a1_kernel(a, st)
    a2 = a2_kernel(a, st)
    n2 = n2_kernel(a, st)
    g1, g2, g3 = make_gemms(a, st)
    a.launch(pre, 256, 256, pre_lds)
    for L in range(2):
        a.launch(a1[L], 256, 256, a1_lds)
        a.launch(a2[L], 256, 256, 0)
        a.launch(g1.names[L], 256, 512, g1.lds)
        a.launch(n2[L], 256, 256, 0)
        a.launch(g2.names[L], 256, 512, g2.lds)
        a.launch(g3.names[L], 256, 512, g3.lds)
    if extra_empty:
        a.begin_kernel('e_kernel'); a('s_endpgm'); a.end_kernel('e_kernel', 8, 16)
        for i in range(extra_empty):
            a.launch('e_kernel', 256, 256, 0)
    open(path, 'w').write(a.text(HEADER))
if __name__ == '__main__':
    build('interleave_layers__spectral_fnet__mixer_gmlp__prompt.s')
    build('full_e10.s', extra_empty=10)
```

```python
from gemm2 import *
from fft import scale_shift

def dpp_reduce16(a, regs, tmp):
    for T in range(2):
        for i in range(2):
            for r in range(4):
                x = regs[(T, i, r)]
                a(f'v_add_f32_dpp v{x}, v{x}, v{x} row_ror:8 row_mask:0xf bank_mask:0x3')
    for T in range(2):
        for i in range(2):
            for r in range(4):
                x = regs[(T, i, r)]; y = regs[(T, i + 2, r)]
                a(f'v_add_f32_dpp v{x}, v{y}, v{y} row_ror:8 row_mask:0xf bank_mask:0xc')
    for T in range(2):
        for r in range(4):
            x = regs[(T, 0, r)]
            a(f'v_add_f32_dpp v{x}, v{x}, v{x} row_half_mirror row_mask:0xf bank_mask:0x5')
    for T in range(2):
        for r in range(4):
            x = regs[(T, 0, r)]; y = regs[(T, 1, r)]
            a(f'v_add_f32_dpp v{x}, v{y}, v{y} row_half_mirror row_mask:0xf bank_mask:0xa')
    for pat in ('[1,0,3,2]', '[2,3,0,1]'):
        for T in range(2):
            for r in range(4):
                x = regs[(T, 0, r)]
                a(f'v_add_f32_dpp v{x}, v{x}, v{x} quad_perm:{pat} row_mask:0xf bank_mask:0xf')
    for r in range(1, 4):
        m = 0x1111111111111111 << r
        a(f's_mov_b32 s{tmp}, {m & 0xffffffff}')
        a(f's_mov_b32 s{tmp+1}, {m >> 32}')
        for T in range(2):
            a(f'v_cndmask_b32 v{regs[(T,0,0)]}, v{regs[(T,0,0)]}, v{regs[(T,0,r)]}, s[{tmp}:{tmp+1}]')
    return [regs[(0, 0, 0)], regs[(1, 0, 0)]]

class EpiBase:
    def loads(self, a, c): pass
    def cons_pre(self, a, c): pass
    def cons_pre2(self, a, c): pass
    def cons_late(self, a, c): pass
    def loop_hook(self, a, c): pass
    def producer(self, a, c): pass

def dpp_reduce16b(a, regs, tmp):
    for i in range(2):
        for r in range(4):
            x = regs[(0, i, r)]
            a(f'v_add_f32_dpp v{x}, v{x}, v{x} row_ror:8 row_mask:0xf bank_mask:0x3')
    for i in range(2):
        for r in range(4):
            x = regs[(0, i, r)]; y = regs[(1, i, r)]
            a(f'v_add_f32_dpp v{x}, v{y}, v{y} row_ror:8 row_mask:0xf bank_mask:0xc')
    for r in range(4):
        x = regs[(0, 0, r)]
        a(f'v_add_f32_dpp v{x}, v{x}, v{x} row_half_mirror row_mask:0xf bank_mask:0x5')
    for r in range(4):
        x = regs[(0, 0, r)]; y = regs[(0, 1, r)]
        a(f'v_add_f32_dpp v{x}, v{y}, v{y} row_half_mirror row_mask:0xf bank_mask:0xa')
    for pat in ('[1,0,3,2]', '[2,3,0,1]'):
        for r in range(4):
            x = regs[(0, 0, r)]
            a(f'v_add_f32_dpp v{x}, v{x}, v{x} quad_perm:{pat} row_mask:0xf bank_mask:0xf')
    for r in range(1, 4):
        m = 0x1111111111111111 << r
        a(f's_mov_b32 s{tmp}, {m & 0xffffffff}')
        a(f's_mov_b32 s{tmp+1}, {m >> 32}')
        a(f'v_cndmask_b32 v{regs[(0,0,0)]}, v{regs[(0,0,0)]}, v{regs[(0,0,r)]}, s[{tmp}:{tmp+1}]')
    return regs[(0, 0, 0)]

class EpiG1(EpiBase):
    PFV = 240
    def loads(self, a, c):
        a(f's_load_dwordx2 s[40:41], s[0:1], {KA["w_sp"]}')
        a(f's_load_dwordx2 s[42:43], s[0:1], {KA["w_out"]}')
    def cons_pre2(self, a, c):
        a('s_waitcnt lgkmcnt(0)')
        srd(a, 52, 40, 0, 8 * MB)
        srd(a, 56, 42, 0, 1792 * 2048)
        a('s_cmp_eq_u32 s33, 0')
        a('s_cselect_b32 s54, s54, 0')
        a('s_cselect_b32 s58, s58, 0')
        a('s_lshl_b32 s60, s2, 2')
        a('s_add_u32 s60, s60, s3')
        a('s_mul_i32 s61, s60, 3584')
        a('s_lshl_b32 s60, s60, 13')
        a(f'v_lshlrev_b32 v{self.PFV}, 4, v0')
    def loop_hook(self, a, c):
        L1 = a.label('pf1'); L2 = a.label('pf2')
        a('s_cmp_lt_u32 s30, 7')
        a(f's_cbranch_scc1 {L1}')
        a('s_cmp_eq_u32 s30, 15')
        a(f's_cbranch_scc1 {L2}')
        a(f'buffer_load_dwordx4 {vr(self.PFV+4,4)}, v{self.PFV}, s[52:55], s60 offen')
        a('s_add_u32 s60, s60, 1024')
        a(f's_branch {L2}')
        a.place(L1)
        a('s_cmp_lt_u32 s30, 3')
        a(f's_cbranch_scc1 {L2}')
        a(f'buffer_load_dwordx4 {vr(self.PFV+4,4)}, v{self.PFV}, s[56:59], s61 offen')
        a('s_add_u32 s61, s61, 1024')
        a.place(L2)
    def consumer(self, a, c):
        NT = c.NT
        C0 = -2.0 * 0.7978845608028654 * 1.4426950408889634
        C1 = C0 * 0.044715
        K0 = 2; K1 = 4
        T = c.V0
        ST = c.V0 + 40
        a(f'v_mov_b32 v{K0}, {f32(C0)}')
        a(f'v_mov_b32 v{K0+1}, {f32(C0)}')
        a(f'v_mov_b32 v{K1}, {f32(C1)}')
        a(f'v_mov_b32 v{K1+1}, {f32(C1)}')
        srd(a, 12, 38, WS_ZT, 3584 * 4096, True)
        srd(a, 48, 38, WS_PS, 512 * 1024, True)
        a('v_and_b32 v1, 15, v0')
        a('v_lshlrev_b32 v1, 12, v1')
        a('v_bfe_u32 v6, v0, 4, 1')
        a('v_lshl_add_u32 v1, v6, 5, v1')
        a('v_bfe_u32 v6, v0, 5, 1')
        a('v_lshl_add_u32 v1, v6, 4, v1')
        a('s_and_b32 s45, s17, 1')
        a('s_add_u32 s44, s45, 3')
        a('s_lshr_b32 s46, s17, 1')
        a('s_mul_i32 s46, s46, 224')
        a('s_mul_i32 s24, s45, 96')
        a('s_add_u32 s24, s24, s46')
        a('s_add_u32 s24, s24, 1792')
        a('s_mul_i32 s47, s44, s22')
        a('s_lshl_b32 s47, s47, 4')
        a('s_add_u32 s24, s24, s47')
        a('s_lshl_b32 s25, s45, 7')
        a('s_add_u32 s25, s25, s46')
        a('s_sub_u32 s47, 7, s44')
        a('s_mul_i32 s47, s47, s22')
        a('s_sub_u32 s47, s47, s44')
        a('s_lshl_b32 s47, s47, 4')
        a('s_add_u32 s25, s25, s47')
        a('s_lshl_b32 s24, s24, 12')
        a('s_lshl_b32 s25, s25, 12')
        a('s_lshl_b32 s46, s16, 8')
        a('s_lshl_b32 s47, s21, 7')
        a('s_add_u32 s46, s46, s47')
        a('s_add_u32 s24, s24, s46')
        a('s_add_u32 s25, s25, s46')
        a('s_cmp_eq_u32 s45, 0')
        a('s_cselect_b32 s62, s25, s24')
        a(f's_add_u32 s62, s62, {3*65536}')
        a(f's_add_u32 s25, s25, {4*65536}')
        S = lambda Tt, i, r: ST + Tt * 16 + i * 4 + r
        cnt = [0]
        def prs_of(j, ip):
            prs = []
            for ii in range(2):
                A = c.ACC(2 * ip + ii, j)
                for hh in range(2):
                    prs.append((A + 2 * hh, T + 4 * ii + 2 * hh, 2 * ip + ii, hh))
            return prs
        def gelu(j, ip):
            prs = prs_of(j, ip)
            for (x, t, i, hh) in prs:
                a(f'v_pk_mul_f32 {vr(t,2)}, {vr(x,2)}, {vr(x,2)}')
            for (x, t, i, hh) in prs:
                a(f'v_pk_fma_f32 {vr(t,2)}, {vr(t,2)}, {vr(K1,2)}, {vr(K0,2)}')
            for (x, t, i, hh) in prs:
                a(f'v_pk_mul_f32 {vr(t,2)}, {vr(t,2)}, {vr(x,2)}')
            for (x, t, i, hh) in prs:
                a(f'v_exp_f32 v{t}, v{t}')
                a(f'v_exp_f32 v{t+1}, v{t+1}')
            for (x, t, i, hh) in prs:
                a(f'v_pk_add_f32 {vr(t,2)}, {vr(t,2)}, 1.0 op_sel_hi:[1,0]')
            for (x, t, i, hh) in prs:
                a(f'v_rcp_f32 v{t}, v{t}')
                a(f'v_rcp_f32 v{t+1}, v{t+1}')
            for (x, t, i, hh) in prs:
                a(f'v_pk_mul_f32 {vr(x,2)}, {vr(t,2)}, {vr(x,2)}')
        def store(j, ip, sreg):
            ob = T + 16 + 4 * (cnt[0] % 4); cnt[0] += 1
            for k, (x, t, i, hh) in enumerate(prs_of(j, ip)):
                a(f'v_cvt_pk_bf16_f32 v{ob+k}, v{x}, v{x+1}')
            a('s_nop 0')
            a(f'v_permlane16_swap_b32 v{ob}, v{ob+2}')
            a(f'v_permlane16_swap_b32 v{ob+1}, v{ob+3}')
            a(f'buffer_store_dwordx4 {vr(ob,4)}, v1, s[12:15], {sreg} offen offset:{ip*64}{c.stflag}')
        for j in range(4):
            for ip in range(2):
                gelu(j, ip)
        for i in range(4):
            for hh in range(2):
                x0 = c.ACC(i, 0) + 2 * hh; x1 = c.ACC(i, 1) + 2 * hh
                a(f'v_pk_add_f32 {vr(S(0,i,2*hh),2)}, {vr(x0,2)}, {vr(x1,2)}')
                a(f'v_pk_mul_f32 {vr(S(1,i,2*hh),2)}, {vr(x0,2)}, {vr(x0,2)}')
        Ls = a.label('not3')
        for j in range(1, 4):
            if j == 3:
                a('s_cmp_eq_u32 s45, 0')
                a(f's_cbranch_scc1 {Ls}')
            for i in range(4):
                for hh in range(2):
                    x = c.ACC(i, j) + 2 * hh
                    if j > 1:
                        a(f'v_pk_add_f32 {vr(S(0,i,2*hh),2)}, {vr(S(0,i,2*hh),2)}, {vr(x,2)}')
                    a(f'v_pk_fma_f32 {vr(S(1,i,2*hh),2)}, {vr(x,2)}, {vr(x,2)}, {vr(S(1,i,2*hh),2)}')
        a.place(Ls)
        regs = {(Tt, i, r): S(Tt, i, r) for Tt in range(2) for i in range(4) for r in range(4)}
        a('v_bfe_u32 v6, v0, 2, 1')
        a('v_lshlrev_b32 v6, 4, v6')
        a('v_lshrrev_b32 v7, 4, v0')
        a('v_lshl_add_u32 v6, v7, 2, v6')
        a('v_and_b32 v8, 3, v0')
        a('v_add_u32 v6, v6, v8')
        a('v_lshlrev_b32 v6, 3, v6')
        a('v_bfe_u32 v8, v0, 3, 1')
        a('v_lshl_add_u32 v6, v8, 13, v6')
        out = dpp_reduce16(a, regs, 26)
        a(f'v_max_f32 v{out[0]+1}, 0, v{out[1]}')
        a('s_lshl_b32 s46, s16, 1')
        a('s_add_u32 s46, s46, s21')
        a('s_lshl_b32 s46, s46, 14')
        a('s_lshl_b32 s47, s17, 1')
        a('s_add_u32 s47, s47, s22')
        a('s_lshl_b32 s47, s47, 8')
        a('s_add_u32 s46, s46, s47')
        a(f'buffer_store_dwordx2 {vr(out[0],2)}, v6, s[48:51], s46 offen sc1')
        for j in range(4, NT):
            for ip in range(2):
                gelu(j, ip)
                store(j, ip, 's25')
            a('s_add_u32 s25, s25, 65536')
        a('v_lshlrev_b32 v7, 4, v7')
        a('s_lshl_b32 s46, s21, 8')
        a('v_add_u32 v7, s46, v7')
        a('s_barrier')
        SC = ST
        for i in range(4):
            a(f'ds_read_b128 {vr(SC+8*i,4)}, v7 offset:{64*i}')
            a(f'ds_read_b128 {vr(SC+8*i+4,4)}, v7 offset:{512+64*i}')
        a('s_waitcnt lgkmcnt(0)')
        def norm(j):
            for i in range(4):
                for hh in range(2):
                    x = c.ACC(i, j) + 2 * hh
                    a(f'v_pk_fma_f32 {vr(x,2)}, {vr(x,2)}, {vr(SC+8*i+2*hh,2)}, {vr(SC+8*i+4+2*hh,2)}')
        for j in range(3):
            norm(j)
            for ip in range(2):
                store(j, ip, 's24')
            a('s_add_u32 s24, s24, 65536')
        Ls = a.label('not3n')
        a('s_cmp_eq_u32 s45, 0')
        a(f's_cbranch_scc1 {Ls}')
        norm(3)
        a.place(Ls)
        for ip in range(2):
            store(3, ip, 's62')
    def producer(self, a, c):
        L = 32
        srd(a, 48, 38, WS_PS, 512 * 1024, True)
        a('v_lshlrev_b32 v1, 4, v0')
        a('s_lshl_b32 s46, s16, 2')
        a('s_add_u32 s46, s46, s3')
        a('s_lshl_b32 s46, s46, 13')
        a('s_add_u32 s47, s46, 4096')
        a('s_mov_b32 s44, 0x8000')
        a('s_sleep 16')
        Lp = a.label('poll'); Lok = a.label('pollok')
        a.place(Lp)
        for k in range(8):
            a(f'buffer_load_dwordx4 {vr(L+4*k,4)}, v1, s[48:51], s{46 + (k>>2)} offen offset:{(k&3)*1024} sc1')
        a('s_waitcnt vmcnt(0)')
        a(f'v_max_u32 v2, v{L+1}, v{L+3}')
        for k in range(1, 8):
            a(f'v_max3_u32 v2, v2, v{L+4*k+1}, v{L+4*k+3}')
        a('v_cmp_eq_u32 vcc, -1, v2')
        a('s_sub_u32 s44, s44, 1')
        a('s_cmp_eq_u32 s44, 0')
        a(f's_cbranch_scc1 {Lok}')
        a('s_cmp_eq_u64 vcc, 0')
        a(f's_cbranch_scc1 {Lok}')
        a('s_sleep 2')
        a(f's_branch {Lp}')
        a.place(Lok)
        for k in range(1, 8):
            for h in range(2):
                a(f'v_pk_add_f32 {vr(L+2*h,2)}, {vr(L+2*h,2)}, {vr(L+4*k+2*h,2)}')
        for op in ('v_permlane16_swap_b32', 'v_permlane32_swap_b32'):
            for r in range(4):
                a(f'v_mov_b32 v{L+4+r}, v{L+r}')
            a('s_nop 1')
            for r in range(4):
                a(f'{op} v{L+r}, v{L+4+r}')
            a('s_nop 1')
            for r in range(4):
                a(f'v_add_f32 v{L+r}, v{L+r}, v{L+4+r}')
        scale_shift(a, L, L + 8, 1792, cnt=2)
        a('v_and_b32 v2, 15, v0')
        a('v_lshlrev_b32 v2, 3, v2')
        a('s_lshl_b32 s46, s3, 7')
        a('v_add_u32 v2, s46, v2')
        a(f'ds_write_b64 v2, {vr(L+8,2)}')
        a(f'ds_write_b64 v2, {vr(L+10,2)} offset:512')
        a('s_waitcnt lgkmcnt(0)')
        a('s_barrier')

def exchange(a, c, ntile, rbase):
    NT = c.NT
    a('v_lshlrev_b32 v2, 4, v0')
    a(f's_mul_i32 s24, s3, {2*NT*1024}')
    a('v_add_u32 v3, s24, v2')
    a('s_xor_b32 s25, s3, 2')
    a(f's_mul_i32 s24, s25, {2*NT*1024}')
    a('v_add_u32 v2, s24, v2')
    a('s_nop 7')
    for t in range(2 * NT):
        a(f'ds_write_b128 v3, {vr(c.ACC(2, 0) + 4*t, 4)} offset:{t*1024}')
    a('s_waitcnt lgkmcnt(0)')
    a('s_barrier')
    for t in range(2 * NT):
        a(f'ds_read_b128 {vr(rbase + 4*t, 4)}, v2 offset:{t*1024}')

class EpiG2(EpiBase):
    Z1 = 216
    def loads(self, a, c):
        a(f's_load_dwordx2 s[40:41], s[0:1], {KA["b_sp"]}')
    def cons_pre(self, a, c):
        a('s_lshl_b32 s24, s3, 6')
        a('v_add_u32 v1, s24, v0')
        a('v_lshlrev_b32 v1, 6, v1')
        a('s_lshl_b32 s25, s33, 14')
        a(f's_add_u32 s25, s25, {WS_ST + 2*16384}')
        a('v_and_b32 v15, 15, v0')
        a('v_lshlrev_b32 v15, 12, v15')
        a('v_bfe_u32 v6, v0, 4, 1')
        a('v_lshlrev_b32 v7, 5, v6')
        a('v_bfe_u32 v6, v0, 5, 1')
        a('v_lshl_add_u32 v7, v6, 4, v7')
        a('v_add_u32 v15, v15, v7')
        a('s_lshl_b32 s43, s16, 8')
        a('s_lshl_b32 s24, s21, 7')
        a('s_add_u32 s43, s43, s24')
        a('s_lshl_b32 s24, s22, 6')
        a('s_add_u32 s43, s43, s24')
        a(f's_mul_i32 s42, s17, {112*4096}')
        a('s_add_u32 s42, s42, s43')
        a(f'v_mov_b32 v{self.Z1+32}, v7')
    def cons_late(self, a, c):
        srd(a, 44, 40, 0, 4096)
        a(f'buffer_load_dwordx4 {vr(self.Z1+28, 4)}, v{self.Z1+32}, s[44:47], s43 offen')
        srd(a, 12, 38, WS_ZT, 1792 * 4096, True)
        a('s_mov_b32 s24, s42')
        for j in range(7):
            a(f'buffer_load_dwordx4 {vr(self.Z1 + 4*j, 4)}, v15, s[12:15], s24 offen')
            if j < 6: a('s_add_u32 s24, s24, 65536')
    def consumer(self, a, c):
        NT = c.NT
        RB = c.V0
        exchange(a, c, 2 * NT, RB)
        BI = c.V0 + 56
        T = c.V0 + 64
        a('s_waitcnt vmcnt(0)')
        for d in range(4):
            a(f'v_lshlrev_b32 v{BI+2*d}, 16, v{self.Z1+28+d}')
            a(f'v_and_b32 v{BI+2*d+1}, 0xffff0000, v{self.Z1+28+d}')
        srd(a, 12, 38, WS_HT, 1792 * 4096, True)
        for j in range(NT):
            a(f's_waitcnt lgkmcnt({min(15, NT - 1 - j)})')
            A0 = c.ACC(0, j); A1 = c.ACC(1, j)
            for (A, R) in ((A0, RB + 4 * j), (A1, RB + 4 * (NT + j))):
                for hh in range(2):
                    a(f'v_pk_add_f32 {vr(A+2*hh,2)}, {vr(A+2*hh,2)}, {vr(R+2*hh,2)}')
            for d in range(4):
                z = self.Z1 + 4 * j + d
                a(f'v_lshlrev_b32 v{T+2*d}, 16, v{z}')
                a(f'v_and_b32 v{T+2*d+1}, 0xffff0000, v{z}')
            for r in range(4):
                a(f'v_permlane16_swap_b32 v{A0+r}, v{A1+r}')
            prs = [A0, A0 + 2, A1, A1 + 2]
            for d in range(4):
                a(f'v_pk_add_f32 {vr(prs[d],2)}, {vr(prs[d],2)}, {vr(BI+2*d,2)}')
            for d in range(4):
                a(f'v_pk_mul_f32 {vr(prs[d],2)}, {vr(prs[d],2)}, {vr(T+2*d,2)}')
            for d in range(4):
                a(f'v_cvt_pk_bf16_f32 v{self.Z1+4*j+d}, v{prs[d]}, v{prs[d]+1}')
            a(f'buffer_store_dwordx4 {vr(self.Z1+4*j,4)}, v15, s[12:15], s42 offen{c.stflag}')
            a('s_add_u32 s42, s42, 65536')

class EpiG3(EpiBase):
    X1 = 160
    def loads(self, a, c):
        a(f's_load_dwordx2 s[40:41], s[0:1], {KA["out"]}')
    def cons_pre(self, a, c):
        a('v_and_b32 v15, 15, v0')
        a('v_lshlrev_b32 v15, 11, v15')
        a('v_bfe_u32 v6, v0, 4, 1')
        a('v_lshl_add_u32 v15, v6, 5, v15')
        a('v_bfe_u32 v6, v0, 5, 1')
        a('v_lshl_add_u32 v15, v6, 4, v15')
        a('s_lshl_b32 s43, s16, 7')
        a('s_lshl_b32 s24, s21, 6')
        a('s_add_u32 s43, s43, s24')
        a('s_lshl_b32 s24, s22, 5')
        a('s_add_u32 s43, s43, s24')
        a('s_lshl_b32 s42, s43, 11')
        a('s_lshl_b32 s24, s17, 7')
        a('s_add_u32 s42, s42, s24')
        a('s_add_u32 s48, s42, 32768')
    def cons_late(self, a, c):
        srd(a, 12, 38, WS_X1, 4 * MB, True)
        for i in range(2):
            for jp in range(2):
                a(f'buffer_load_dwordx4 {vr(self.X1 + 8*i + 4*jp, 4)}, v15, s[12:15], s{42 if i == 0 else 48} offen offset:{jp*64}')
    def consumer(self, a, c):
        NT = c.NT
        RB = c.V0
        exchange(a, c, 2 * NT, RB)
        T = c.V0 + 32
        ST = c.V0 + 40
        a(f's_add_u32 s24, s38, {WS_X2}')
        a('s_addc_u32 s25, s39, 0')
        a('s_cmp_eq_u32 s33, 0')
        a('s_cselect_b32 s12, s24, s40')
        a('s_cselect_b32 s13, s25, s41')
        a(f's_mov_b32 s14, {4*MB}')
        a('s_mov_b32 s15, 0x20000')
        for r in range(8):
            a(f'v_mov_b32 v{ST+r}, 0')
        a('s_waitcnt vmcnt(0)')
        for i in range(2):
            for jp in range(2):
                a(f's_waitcnt lgkmcnt({2*NT - (i*NT + 2*jp + 2)})')
                A0 = c.ACC(i, 2 * jp); A1 = c.ACC(i, 2 * jp + 1)
                for (A, R) in ((A0, RB + 4 * (i * NT + 2 * jp)), (A1, RB + 4 * (i * NT + 2 * jp + 1))):
                    for hh in range(2):
                        a(f'v_pk_add_f32 {vr(A+2*hh,2)}, {vr(A+2*hh,2)}, {vr(R+2*hh,2)}')
                X = self.X1 + 8 * i + 4 * jp
                for d in range(4):
                    a(f'v_lshlrev_b32 v{T+2*d}, 16, v{X+d}')
                    a(f'v_and_b32 v{T+2*d+1}, 0xffff0000, v{X+d}')
                for r in range(4):
                    a(f'v_permlane16_swap_b32 v{A0+r}, v{A1+r}')
                prs = [A0, A0 + 2, A1, A1 + 2]
                for d in range(4):
                    a(f'v_pk_add_f32 {vr(prs[d],2)}, {vr(prs[d],2)}, {vr(T+2*d,2)}')
                for d in range(4):
                    a(f'v_cvt_pk_bf16_f32 v{X+d}, v{prs[d]}, v{prs[d]+1}')
                a(f'buffer_store_dwordx4 {vr(X,4)}, v15, s[12:15], s{42 if i == 0 else 48} offen offset:{jp*64}{c.stflag}')
                for d in range(4):
                    a(f'v_pk_add_f32 {vr(ST+4*i,2)}, {vr(ST+4*i,2)}, {vr(prs[d],2)}')
                    a(f'v_pk_fma_f32 {vr(ST+4*i+2,2)}, {vr(prs[d],2)}, {vr(prs[d],2)}, {vr(ST+4*i+2,2)}')
        Ld = a.label('g3done')
        a('s_cmp_lg_u32 s33, 0')
        a(f's_cbranch_scc1 {Ld}')
        RS = 144
        a('v_and_b32 v2, 15, v0')
        a(f'v_mul_u32_u24 v2, {RS}, v2')
        a('v_bfe_u32 v6, v0, 4, 1')
        a('v_lshl_add_u32 v2, v6, 5, v2')
        a('v_bfe_u32 v6, v0, 5, 1')
        a('v_lshl_add_u32 v2, v6, 4, v2')
        a(f's_mul_i32 s24, s3, {32*RS}')
        a('s_add_u32 s24, s24, 32768')
        a('v_add_u32 v2, s24, v2')
        for i in range(2):
            for jp in range(2):
                X = self.X1 + 8 * i + 4 * jp
                a(f'ds_write_b128 v2, {vr(X,4)} offset:{i*16*RS + jp*64}')
        for i in range(2):
            a(f'v_add_f32 v{ST+4*i}, v{ST+4*i}, v{ST+4*i+1}')
            a(f'v_add_f32 v{ST+4*i+2}, v{ST+4*i+2}, v{ST+4*i+3}')
        a('s_nop 1')
        for i in range(2):
            a(f'v_permlane16_swap_b32 v{ST+4*i}, v{ST+4*i+2}')
        a('s_nop 1')
        for i in range(2):
            a(f'v_add_f32 v{ST+4*i}, v{ST+4*i}, v{ST+4*i+2}')
        a('s_nop 1')
        a(f'v_permlane32_swap_b32 v{ST}, v{ST+4}')
        a('s_nop 1')
        a(f'v_add_f32 v{ST}, v{ST}, v{ST+4}')
        a('v_and_b32 v3, 15, v0')
        a('v_lshl_add_u32 v3, v6, 4, v3')
        a('v_lshlrev_b32 v3, 3, v3')
        a('v_bfe_u32 v6, v0, 4, 1')
        a('v_lshl_add_u32 v3, v6, 2, v3')
        a('s_lshl_b32 s25, s43, 3')
        srd(a, 44, 38, WS_ST + 16384, 16384)
        a(f'buffer_atomic_add_f32 v{ST}, v3, s[44:47], s25 offen')
        a('v_bfe_u32 v3, v0, 2, 2')
        a('v_lshrrev_b32 v4, 4, v0')
        a('v_lshl_add_u32 v3, v4, 3, v3')
        a(f'v_mul_u32_u24 v3, {RS}, v3')
        a('v_and_b32 v5, 3, v0')
        a('v_lshl_add_u32 v3, v5, 3, v3')
        a('v_add_u32 v3, s24, v3')
        a('v_and_b32 v5, 15, v0')
        a('v_lshlrev_b32 v5, 12, v5')
        a('v_lshl_add_u32 v5, v4, 4, v5')
        a('s_lshl_b32 s24, s17, 18')
        a('s_lshl_b32 s25, s43, 1')
        a('s_add_u32 s24, s24, s25')
        srd(a, 12, 38, WS_XT + LR, 4 * MB)
        a('s_waitcnt lgkmcnt(0)')
        for j in range(4):
            for u in range(2):
                a(f'ds_read_b64_tr_b16 {vr(RB + 4*j + 2*u, 2)}, v3 offset:{u*4*RS + j*32}')
        for j in range(4):
            a(f's_waitcnt lgkmcnt({6 - 2*j})')
            a(f'buffer_store_dwordx4 {vr(RB+4*j,4)}, v5, s[12:15], s24 offen{c.stflag}')
            a('s_add_u32 s24, s24, 65536')
        a.place(Ld)

def make_gemms(a, stflag='', flags=(), sfx='', g2mode='kc'):
    g1 = G(name='g1'+sfx, names=['g1a'+sfx+'_kernel', 'g1b'+sfx+'_kernel'], K=1024, BN=224, amode='kc', bmode='tr', ksplit=1, lda=2048, ldb=7168,
           a_src=('ws', WS_XN1), b_src=('w_in', 0), a_bytes=4*MB, b_bytes=1024*7168, xm=8, xn=4, swap=False, stflag=stflag, NS=3, mixed=True)
    g2 = G(name='g2'+sfx, names=['g2a'+sfx+'_kernel', 'g2b'+sfx+'_kernel'], K=2048, BN=112, amode='kc', bmode=g2mode, ksplit=2, lda=4096, ldb=4096,
           a_src=('w_sp', 0), b_src=('ws', WS_ZT + 1792*4096), a_bytes=8*MB, b_bytes=1792*4096, xm=4, xn=8, swap=False, stflag=stflag, NS=5)
    g3 = G(name='g3'+sfx, names=['g3a'+sfx+'_kernel', 'g3b'+sfx+'_kernel'], K=1792, BN=64, amode='tr', bmode='tr', ksplit=2, lda=4096, ldb=2048,
           a_src=('ws', WS_HT), b_src=('w_out', 0), a_bytes=1792*4096, b_bytes=1792*2048, xm=4, xn=8, swap=True, stflag=stflag, NS=6)
    for g, e in ((g1, EpiG1()), (g2, EpiG2()), (g3, EpiG3())):
        g.flags = set(flags)
        g.kid = {'g1': 0, 'g2': 1, 'g3': 2}[g.name[:2]]
        gemm_kernel(a, g, e)
    return g1, g2, g3
```

```python
from gemm2 import *

def wave_sum(a, x, t):
    xs = x if isinstance(x, list) else [x]
    ts = t if isinstance(t, list) else [t]
    for mod in ('quad_perm:[1,0,3,2]', 'quad_perm:[2,3,0,1]', 'row_half_mirror', 'row_mirror'):
        a('s_nop 1')
        for r in xs:
            a(f'v_add_f32_dpp v{r}, v{r}, v{r} {mod} row_mask:0xf bank_mask:0xf')
    for op in ('v_permlane16_swap_b32', 'v_permlane32_swap_b32'):
        for r, tt in zip(xs, ts):
            a(f'v_mov_b32 v{tt}, v{r}')
        a('s_nop 1')
        for r, tt in zip(xs, ts):
            a(f'{op} v{r}, v{tt}')
        a('s_nop 1')
        for r, tt in zip(xs, ts):
            a(f'v_add_f32 v{r}, v{r}, v{tt}')

def scale_shift(a, V, O, n, cnt=8):
    inv = f32(1.0 / n)
    for k in range(cnt):
        a(f'v_mul_f32 v{V+2*k}, {inv}, v{V+2*k}')
        a(f'v_mul_f32 v{V+2*k+1}, {inv}, v{V+2*k+1}')
    for k in range(cnt):
        a(f'v_fma_f32 v{V+2*k+1}, -v{V+2*k}, v{V+2*k}, v{V+2*k+1}')
    for k in range(cnt):
        a(f'v_max_f32 v{V+2*k+1}, 0, v{V+2*k+1}')
        a(f'v_add_f32 v{V+2*k+1}, {f32(1e-5)}, v{V+2*k+1}')
    for k in range(cnt):
        a(f'v_rsq_f32 v{O+k}, v{V+2*k+1}')
    a('s_nop 0')
    for k in range(cnt):
        a(f'v_mul_f32 v{O+cnt+k}, -v{V+2*k}, v{O+k}')

def dft_consts(a, N, nks, C, S, vn, vh, tmp, scale=1.0):
    base = tmp
    a(f'v_mul_f32 v{base}, v{vn}, v{vh}')
    a(f'v_mul_f32 v{base}, {f32(1.0/N)}, v{base}')
    for ks in range(nks):
        for p in range(4):
            for z in range(2):
                e8 = 2 * p + z
                ce = 16 * ks + 8 * (e8 >> 2) + (e8 & 3)
                a(f'v_fmamk_f32 v{tmp+1+z}, v{vn}, {f32(ce / N)}, v{base}')
            a(f'v_cos_f32 v{tmp+3}, v{tmp+1}')
            a(f'v_cos_f32 v{tmp+4}, v{tmp+2}')
            a(f'v_sin_f32 v{tmp+1}, v{tmp+1}')
            a(f'v_sin_f32 v{tmp+2}, v{tmp+2}')
            if scale != 1.0:
                for r in (3, 4, 1, 2):
                    a(f'v_mul_f32 v{tmp+r}, {f32(scale)}, v{tmp+r}')
            else:
                a('s_nop 0')
            a(f'v_cvt_pk_f16_f32 v{C+4*ks+p}, v{tmp+3}, v{tmp+4}')
            a(f'v_cvt_pk_f16_f32 v{S+4*ks+p}, -v{tmp+1}, -v{tmp+2}')

def twiddles(a, N, nreg, TR, TI, vn, vh, tmp):
    a(f'v_mul_f32 v{tmp}, v{vn}, v{vh}')
    a(f'v_mul_f32 v{tmp}, {f32(-1.0/N)}, v{tmp}')
    for x in range(nreg):
        cb = 32 * (x >> 4) + 8 * ((x >> 2) & 3) + (x & 3)
        a(f'v_fmamk_f32 v{TI+x}, v{vn}, {f32(-cb / N)}, v{tmp}')
    for x in range(nreg):
        a(f'v_cos_f32 v{TR+x}, v{TI+x}')
        a(f'v_sin_f32 v{TI+x}, v{TI+x}')

def lane_nh(a, vn, vh):
    a(f'v_and_b32 v{vn}, 31, v0')
    a(f'v_cvt_f32_u32 v{vn}, v{vn}')
    a(f'v_lshrrev_b32 v{vh}, 5, v0')
    a(f'v_lshlrev_b32 v{vh}, 2, v{vh}')
    a(f'v_cvt_f32_u32 v{vh}, v{vh}')

def mf(d, x, y, first):
    return f'v_mfma_f32_32x32x16_f16 {vr(d,16)}, {vr(x,4)}, {vr(y,4)}, {"0" if first else vr(d,16)}'

def prefetch_body(a, label, src, total, start, size, cond_layer=True, nthr=256):
    L_end = a.label('pfend')
    a.place(label)
    a('s_cmp_ge_u32 s2, 512')
    a(f's_cbranch_scc1 {L_end}')
    if cond_layer:
        a('s_cmp_lg_u32 s33, 0')
        a(f's_cbranch_scc1 {L_end}')
    a(f's_load_dwordx2 s[4:5], s[0:1], {KA[src]}')
    per = size // 256
    a('s_sub_u32 s16, s2, 256')
    a(f's_mul_i32 s16, s16, {per}')
    a(f's_add_u32 s16, s16, {start}')
    a('v_lshlrev_b32 v1, 4, v0')
    a(f's_mov_b32 s6, {total}')
    a('s_mov_b32 s7, 0x20000')
    a('s_waitcnt lgkmcnt(0)')
    for k in range(-(-per // (16*nthr))):
        a(f'buffer_load_dwordx4 {vr(4+4*k,4)}, v1, s[4:7], s16 offen')
        a(f's_add_u32 s16, s16, {16*nthr}')
    if not cond_layer:
        Lpc = a.label('pc')
        a('s_getpc_b64 s[8:9]')
        a.place(Lpc)
        a(f's_sub_u32 s8, s8, {Lpc}-pre_kernel')
        a('s_subb_u32 s9, s9, 0')
        a('s_mov_b32 s10, code_end-pre_kernel')
        a('s_mov_b32 s11, 0x20000')
        a('s_sub_u32 s16, s2, 256')
        a('s_lshr_b32 s16, s16, 3')
        a('s_lshl_b32 s16, s16, 11')
        a('v_lshlrev_b32 v2, 3, v0')
        a('buffer_load_dwordx2 v[40:41], v2, s[8:11], s16 offen')
    a.place(L_end)
    a('s_endpgm')

def a1_kernel(a, stflag='', pf=None, stamp=False):
    names = ['a1a_kernel', 'a1b_kernel']
    body = a.label('a1_body')
    entry_stubs(a, names, body, 256)
    L_end = a.label('end')
    a('s_cmp_ge_u32 s2, 256')
    a(f's_cbranch_scc1 {L_end}')
    a(f's_load_dwordx2 s[38:39], s[0:1], {KA["ws"]}')
    st = Stamper(a, stamp); st.init(); st()
    a('v_mov_b32 v1, v0')
    a('v_lshrrev_b32 v2, 6, v0')
    a('v_and_b32 v0, 63, v0')
    a('v_readfirstlane_b32 s3, v2')
    a('v_lshlrev_b32 v2, 6, v1')
    a('v_lshlrev_b32 v3, 4, v1')
    a('s_lshr_b32 s16, s2, 5')
    a('s_lshl_b32 s16, s16, 7')
    a('s_and_b32 s17, s2, 31')
    a('s_add_u32 s16, s16, s17')
    a('s_lshl_b32 s16, s16, 12')
    a('s_lshl_b32 s25, s33, 14')
    a(f's_add_u32 s25, s25, {WS_ST}')
    a('s_waitcnt lgkmcnt(0)')
    srd(a, 4, 38, 's25', 16384)
    srd(a, 8, 38, WS_XT, 4 * MB)
    ST = 16; XD = 32; SC = 48; TMP = 64
    for q in range(4):
        a(f'buffer_load_dwordx4 {vr(ST+4*q,4)}, v2, s[4:7], 0 offen offset:{16*q}')
    for e in range(4):
        a(f'buffer_load_dwordx4 {vr(XD+4*e,4)}, v3, s[8:11], s16 offen')
        if e < 3: a(f's_add_u32 s16, s16, {32*4096}')
    C32 = 72; S32 = 80; C64 = 88; S64 = 104; TR = 120; TI = 152
    YR = 184; YI = 216
    lane_nh(a, 4, 5)
    dft_consts(a, 32, 2, C32, S32, 4, 5, 8)
    dft_consts(a, 64, 4, C64, S64, 4, 5, 8, scale=1.0/16)
    a('v_lshrrev_b32 v6, 3, v1')
    a('v_mul_u32_u24 v6, 192, v6')
    a('v_and_b32 v7, 7, v1')
    a('v_lshl_add_u32 v6, v7, 4, v6')
    st()
    a('s_waitcnt vmcnt(4)')
    st()
    scale_shift(a, ST, SC, 1024)
    for e in range(4):
        a(f's_waitcnt vmcnt({3-e})')
        for d in range(4):
            a(f'v_lshlrev_b32 v{TMP+2*d}, 16, v{XD+4*e+d}')
            a(f'v_and_b32 v{TMP+2*d+1}, 0xffff0000, v{XD+4*e+d}')
        for d in range(4):
            a(f'v_pk_fma_f32 {vr(TMP+2*d,2)}, {vr(TMP+2*d,2)}, {vr(SC+2*d,2)}, {vr(SC+8+2*d,2)}')
        for d in range(4):
            a(f'v_cvt_pk_f16_f32 v{XD+4*e+d}, v{TMP+2*d}, v{TMP+2*d+1}')
        a(f'ds_write_b128 v6, {vr(XD+4*e,4)} offset:{e*6144}')
    a('v_bfe_u32 v6, v0, 2, 2')
    a('v_lshrrev_b32 v7, 5, v0')
    a('v_lshl_add_u32 v6, v7, 2, v6')
    a('v_mul_u32_u24 v6, 192, v6')
    a('v_bfe_u32 v7, v0, 4, 1')
    a('v_lshl_add_u32 v6, v7, 5, v6')
    a('v_and_b32 v7, 3, v0')
    a('v_lshl_add_u32 v6, v7, 3, v6')
    a('s_mul_i32 s16, s3, 6144')
    a('v_add_u32 v6, s16, v6')
    a('s_waitcnt lgkmcnt(0)')
    st()
    a('s_barrier')
    st()
    AF = 16
    for mt in range(2):
        for ks in range(2):
            for u in range(2):
                a(f'ds_read_b64_tr_b16 {vr(AF + 8*mt + 4*ks + 2*u, 2)}, v6 offset:{ks*3072 + u*1536 + mt*64}')
    twiddles(a, 2048, 32, TR, TI, 4, 5, 8)
    a('s_waitcnt lgkmcnt(0)')
    for mt in range(2):
        for ks in range(2):
            a(mf(YR + 16*mt, AF + 8*mt + 4*ks, C32 + 4*ks, ks == 0))
            a(mf(YI + 16*mt, AF + 8*mt + 4*ks, S32 + 4*ks, ks == 0))
    a('s_nop 15')
    st()
    a(f'v_pk_add_f32 v[8:9], {vr(YR,2)}, {vr(YR+2,2)}')
    for x in range(4, 32, 2):
        a(f'v_pk_add_f32 v[8:9], v[8:9], {vr(YR+x,2)}')
    a('v_sub_f32 v8, v8, v9')
    PR = 16; PI = 32; NI = 48
    for x in range(0, 32, 2):
        t = TMP + (x & 2) * 2
        a(f'v_pk_mul_f32 {vr(t,2)}, {vr(YR+x,2)}, {vr(TR+x,2)}')
        a(f'v_pk_mul_f32 {vr(t+2,2)}, {vr(YR+x,2)}, {vr(TI+x,2)}')
        a(f'v_pk_fma_f32 {vr(t,2)}, {vr(YI+x,2)}, {vr(TI+x,2)}, {vr(t,2)} neg_lo:[1,0,0] neg_hi:[1,0,0]')
        a(f'v_pk_fma_f32 {vr(t+2,2)}, {vr(YI+x,2)}, {vr(TR+x,2)}, {vr(t+2,2)}')
        a(f'v_cvt_pk_f16_f32 v{PR+x//2}, v{t}, v{t+1}')
        a(f'v_cvt_pk_f16_f32 v{PI+x//2}, v{t+2}, v{t+3}')
        a(f'v_cvt_pk_f16_f32 v{NI+x//2}, -v{t+2}, -v{t+3}')
    a('v_readlane_b32 s16, v8, 0')
    a('v_readlane_b32 s17, v8, 32')
    st()
    ZR = YR; ZI = YI
    a('s_nop 1')
    for ks in range(4):
        a(mf(ZR, PR + 4*ks, C64 + 4*ks, ks == 0))
        a(mf(ZI, PR + 4*ks, S64 + 4*ks, ks == 0))
        a(mf(ZR, NI + 4*ks, S64 + 4*ks, False))
        a(mf(ZI, PI + 4*ks, C64 + 4*ks, False))
    a('v_mov_b32 v8, s16')
    a('v_add_f32 v8, s17, v8')
    a(f'v_mul_f32 v8, {f32(1.0/16)}, v8')
    P0 = 24576
    a('v_and_b32 v6, 31, v0')
    a('v_mul_u32_u24 v6, 144, v6')
    a('v_lshrrev_b32 v7, 5, v0')
    a('v_lshl_add_u32 v6, v7, 4, v6')
    a('s_mul_i32 s16, s3, 4608')
    a(f's_add_u32 s16, s16, {P0}')
    a('v_add_u32 v6, s16, v6')
    a('v_lshrrev_b32 v7, 5, v1')
    a('v_mul_u32_u24 v7, 144, v7')
    a('v_and_b32 v9, 31, v1')
    a('v_lshl_add_u32 v7, v9, 2, v7')
    a('v_lshrrev_b32 v9, 3, v1')
    a('v_lshlrev_b32 v9, 15, v9')
    a('v_and_b32 v10, 7, v1')
    a('v_lshl_add_u32 v9, v10, 4, v9')
    a('s_lshl_b32 s16, s2, 7')
    srd(a, 8, 38, WS_V, 4 * MB)
    a('s_mov_b64 s[18:19], 1')
    a('s_nop 7')
    a(f'v_cndmask_b32 v{ZI}, v{ZI}, v8, s[18:19]')
    W = 16
    for x in range(16):
        a(f'v_cvt_pk_f16_f32 v{W+x}, v{ZR+x}, v{ZI+x}')
    for g in range(4):
        a(f'ds_write_b128 v6, {vr(W+4*g,4)} offset:{g*32}')
    a('s_waitcnt lgkmcnt(0)')
    st()
    a('s_barrier')
    O = 32
    for q in range(4):
        for e in range(4):
            a(f'ds_read_b32 v{O+4*q+e}, v7 offset:{P0 + e*4608 + q*8*144}')
    for q in range(4):
        a(f's_waitcnt lgkmcnt({12-4*q})')
        a(f'buffer_store_dwordx4 {vr(O+4*q,4)}, v9, s[8:11], s16 offen{stflag}')
        if q < 3: a(f's_add_u32 s16, s16, {MB}')
    st()
    if stamp: a('s_waitcnt vmcnt(0)')
    st()
    st.dump(3, 's3')
    a('s_endpgm')
    if pf: prefetch_body(a, L_end, *pf)
    else:
        a.place(L_end); a('s_endpgm')
    return names, P0 + 4 * 4608

def a2_kernel(a, stflag='', pf=None, stamp=False):
    names = ['a2a_kernel', 'a2b_kernel']
    body = a.label('a2_body')
    entry_stubs(a, names, body, 256 if stamp else 168)
    L_end = a.label('end')
    a('s_cmp_ge_u32 s2, 256')
    a(f's_cbranch_scc1 {L_end}')
    a(f's_load_dwordx2 s[38:39], s[0:1], {KA["ws"]}')
    a(f's_load_dwordx2 s[40:41], s[0:1], {KA["x"]}')
    st = Stamper(a, stamp); st.init(); st()
    a('v_lshrrev_b32 v2, 6, v0')
    a('v_and_b32 v0, 63, v0')
    a('s_nop 0')
    a('v_readfirstlane_b32 s3, v2')
    a('s_and_b32 s16, s2, 7')
    a('s_lshl_b32 s16, s16, 1')
    a('s_bfe_u32 s17, s2, 0x10003')
    a('s_add_u32 s16, s16, s17')
    a('s_and_b32 s17, s2, 0xf0')
    a('s_add_u32 s16, s16, s17')
    a('s_lshl_b32 s16, s16, 2')
    a('s_add_u32 s16, s16, s3')
    a('s_lshr_b32 s17, s16, 3')
    a('s_lshl_b32 s17, s17, 15')
    a('s_and_b32 s18, s16, 7')
    a('s_lshl_b32 s18, s18, 4')
    a('s_add_u32 s17, s17, s18')
    a('s_sub_u32 s19, 2048, s16')
    a('s_cmp_eq_u32 s16, 0')
    a('s_cselect_b32 s19, 1024, s19')
    a('s_lshl_b32 s20, s16, 11')
    a('s_lshl_b32 s21, s19, 11')
    a('v_lshlrev_b32 v1, 7, v0')
    a('v_and_b32 v2, 31, v0')
    a('v_lshlrev_b32 v2, 6, v2')
    a('v_lshrrev_b32 v3, 5, v0')
    a('v_lshl_add_u32 v2, v3, 4, v2')
    a('s_waitcnt lgkmcnt(0)')
    srd(a, 4, 38, WS_V, 4 * MB)
    GG = 16
    for k in range(4):
        a(f'buffer_load_dwordx4 {vr(GG+4*k,4)}, v1, s[4:7], s17 offen')
        if k < 3: a('s_add_u32 s17, s17, 8192')
    a(f's_add_u32 s24, s38, {WS_X2}')
    a('s_addc_u32 s25, s39, 0')
    a('s_cmp_eq_u32 s33, 0')
    a('s_cselect_b32 s8, s40, s24')
    a('s_cselect_b32 s9, s41, s25')
    a(f's_mov_b32 s10, {4*MB}')
    a('s_mov_b32 s11, 0x20000')
    X = 32
    for row in range(2):
        for gp in range(2):
            a(f'buffer_load_dwordx4 {vr(X+8*row+4*gp,4)}, v2, s[8:11], s{20+row} offen offset:{32*gp}')
    C32 = 48; S32 = 56; TR = 64; TI = 80
    P = 96; R = 112; S = 128; Q = 144
    lane_nh(a, 4, 5)
    dft_consts(a, 32, 2, C32, S32, 4, 5, 8)
    twiddles(a, 1024, 16, TR, TI, 4, 5, 8)
    a('s_mov_b32 s22, 0x05040100')
    a('s_mov_b32 s23, 0x07060302')
    AR = 160; AI = 8
    st()
    a('s_waitcnt vmcnt(4)')
    st()
    for k in range(4):
        for p in range(2):
            g = GG + 4 * k + 2 * p
            a(f'v_perm_b32 v{AR+2*k+p}, v{g+1}, v{g}, s22')
            a(f'v_perm_b32 v{AI+2*k+p}, v{g+1}, v{g}, s23')
    a('s_nop 1')
    for ks in range(2):
        a(mf(P, AR + 4*ks, C32 + 4*ks, ks == 0))
        a(mf(R, AR + 4*ks, S32 + 4*ks, ks == 0))
        a(mf(S, AI + 4*ks, C32 + 4*ks, ks == 0))
        a(mf(Q, AI + 4*ks, S32 + 4*ks, ks == 0))
    a('s_nop 15')
    st()
    T = 8
    for x in range(0, 16, 2):
        a(f'v_pk_mul_f32 {vr(T,2)}, {vr(P+x,2)}, {vr(TI+x,2)}')
        a(f'v_pk_mul_f32 {vr(T+2,2)}, {vr(Q+x,2)}, {vr(TI+x,2)}')
        a(f'v_pk_mul_f32 {vr(P+x,2)}, {vr(P+x,2)}, {vr(TR+x,2)}')
        a(f'v_pk_mul_f32 {vr(Q+x,2)}, {vr(Q+x,2)}, {vr(TR+x,2)}')
        a(f'v_pk_fma_f32 {vr(P+x,2)}, {vr(R+x,2)}, {vr(TI+x,2)}, {vr(P+x,2)} neg_lo:[1,0,0] neg_hi:[1,0,0]')
        a(f'v_pk_fma_f32 {vr(Q+x,2)}, {vr(S+x,2)}, {vr(TI+x,2)}, {vr(Q+x,2)}')
        a(f'v_pk_fma_f32 {vr(R+x,2)}, {vr(R+x,2)}, {vr(TR+x,2)}, {vr(T,2)}')
        a(f'v_pk_fma_f32 {vr(S+x,2)}, {vr(S+x,2)}, {vr(TR+x,2)}, {vr(T+2,2)} neg_lo:[0,0,1] neg_hi:[0,0,1]')
    RA = TR; NA = TR + 8; RB = TI; NB = TI + 8
    L0 = a.label('t0'); L1 = a.label('tj')
    a('s_cmp_eq_u32 s16, 0')
    a(f's_cbranch_scc1 {L0}')
    for x in range(0, 16, 2):
        a(f'v_pk_add_f32 {vr(T,2)}, {vr(P+x,2)}, {vr(Q+x,2)} neg_lo:[0,1] neg_hi:[0,1]')
        a(f'v_pk_add_f32 {vr(T+2,2)}, {vr(P+x,2)}, {vr(Q+x,2)}')
        a(f'v_pk_add_f32 {vr(T+4,2)}, {vr(R+x,2)}, {vr(S+x,2)} neg_lo:[1,1] neg_hi:[1,1]')
        a(f'v_pk_add_f32 {vr(T+6,2)}, {vr(S+x,2)}, {vr(R+x,2)} neg_lo:[0,1] neg_hi:[0,1]')
        a(f'v_cvt_pk_f16_f32 v{RA+x//2}, v{T}, v{T+1}')
        a(f'v_cvt_pk_f16_f32 v{RB+x//2}, v{T+2}, v{T+3}')
        a(f'v_cvt_pk_f16_f32 v{NA+x//2}, v{T+4}, v{T+5}')
        a(f'v_cvt_pk_f16_f32 v{NB+x//2}, v{T+6}, v{T+7}')
    a(f's_branch {L1}')
    a.place(L0)
    for x in range(0, 16, 2):
        a(f'v_cvt_pk_f16_f32 v{RA+x//2}, v{P+x}, v{P+x+1}')
        a(f'v_cvt_pk_f16_f32 v{NA+x//2}, -v{R+x}, -v{R+x+1}')
        a(f'v_cvt_pk_f16_f32 v{RB+x//2}, v{S+x}, v{S+x+1}')
        a(f'v_cvt_pk_f16_f32 v{NB+x//2}, -v{Q+x}, -v{Q+x+1}')
    a.place(L1)
    a('s_nop 1')
    st()
    YA = P; YB = R
    for ks in range(2):
        a(mf(YA, RA + 4*ks, C32 + 4*ks, ks == 0))
        a(mf(YB, RB + 4*ks, C32 + 4*ks, ks == 0))
        a(mf(YA, NA + 4*ks, S32 + 4*ks, False))
        a(mf(YB, NB + 4*ks, S32 + 4*ks, False))
    srd(a, 4, 38, WS_X1, 4 * MB)
    srd(a, 12, 38, WS_XN1, 4 * MB)
    XF = S
    a('s_waitcnt vmcnt(0)')
    for k in range(16):
        a(f'v_lshlrev_b32 v{XF+2*k}, 16, v{X+k}')
        a(f'v_and_b32 v{XF+2*k+1}, 0xffff0000, v{X+k}')
    a('v_mov_b32 v4, 16.0')
    a('v_mov_b32 v5, 16.0')
    for Y in (YA, YB):
        for gp in range(2):
            for r in range(4):
                a(f'v_permlane32_swap_b32 v{Y+8*gp+r}, v{Y+8*gp+4+r}')
    a('s_nop 1')
    for k in range(16):
        a(f'v_pk_fma_f32 {vr(P+2*k,2)}, {vr(P+2*k,2)}, v[4:5], {vr(XF+2*k,2)}')
    for k in range(16):
        a(f'v_cvt_pk_bf16_f32 v{X+k}, v{P+2*k}, v{P+2*k+1}')
    for row in range(2):
        for gp in range(2):
            a(f'buffer_store_dwordx4 {vr(X+8*row+4*gp,4)}, v2, s[4:7], s{20+row} offen offset:{32*gp}{stflag}')
    for k in range(16):
        a(f'v_lshlrev_b32 v{XF+2*k}, 16, v{X+k}')
        a(f'v_and_b32 v{XF+2*k+1}, 0xffff0000, v{X+k}')
    st()
    for row in range(2):
        m = 8 + 2 * row
        a(f'v_pk_add_f32 {vr(m,2)}, {vr(XF+16*row,2)}, {vr(XF+16*row+2,2)}')
    for k in range(2, 8):
        for row in range(2):
            m = 8 + 2 * row
            a(f'v_pk_add_f32 {vr(m,2)}, {vr(m,2)}, {vr(XF+16*row+2*k,2)}')
    a('v_add_f32 v8, v8, v9')
    a('v_add_f32 v10, v10, v11')
    wave_sum(a, [8, 10], [9, 11])
    a(f'v_mul_f32 v8, {f32(-1.0/1024)}, v8')
    a(f'v_mul_f32 v10, {f32(-1.0/1024)}, v10')
    for k in range(8):
        for row in range(2):
            m = 8 + 2 * row
            a(f'v_pk_add_f32 {vr(XF+16*row+2*k,2)}, {vr(XF+16*row+2*k,2)}, {vr(m,2)} op_sel_hi:[1,0]')
    for row in range(2):
        m = 12 + 2 * row
        a(f'v_pk_mul_f32 {vr(m,2)}, {vr(XF+16*row,2)}, {vr(XF+16*row,2)}')
    for k in range(1, 8):
        for row in range(2):
            m = 12 + 2 * row
            a(f'v_pk_fma_f32 {vr(m,2)}, {vr(XF+16*row+2*k,2)}, {vr(XF+16*row+2*k,2)}, {vr(m,2)}')
    a('v_add_f32 v12, v12, v13')
    a('v_add_f32 v14, v14, v15')
    wave_sum(a, [12, 14], [13, 15])
    a(f'v_mov_b32 v6, {f32(1e-5)}')
    a(f'v_fmamk_f32 v12, v12, {f32(1.0/1024)}, v6')
    a(f'v_fmamk_f32 v14, v14, {f32(1.0/1024)}, v6')
    a('v_rsq_f32 v12, v12')
    a('v_rsq_f32 v14, v14')
    a('s_nop 0')
    for k in range(8):
        for row in range(2):
            m = 12 + 2 * row
            a(f'v_pk_mul_f32 {vr(XF+16*row+2*k,2)}, {vr(XF+16*row+2*k,2)}, {vr(m,2)} op_sel_hi:[1,0]')
    for k in range(16):
        a(f'v_cvt_pk_bf16_f32 v{GG+k}, v{XF+2*k}, v{XF+2*k+1}')
    for row in range(2):
        for gp in range(2):
            a(f'buffer_store_dwordx4 {vr(GG+8*row+4*gp,4)}, v2, s[12:15], s{20+row} offen offset:{32*gp}{stflag}')
    st()
    if stamp: a('s_waitcnt vmcnt(0)')
    st()
    st.dump(4, 's3')
    a('s_endpgm')
    if pf: prefetch_body(a, L_end, *pf)
    else:
        a.place(L_end); a('s_endpgm')
    return names

def pre_kernel(a, stflag='', pf=None, touch=0):
    name = 'pre_kernel'
    a.begin_kernel(name)
    L_end = a.label('end')
    a('s_cmp_ge_u32 s2, 256')
    a(f's_cbranch_scc1 {L_end}')
    a(f's_load_dwordx2 s[38:39], s[0:1], {KA["ws"]}')
    a(f's_load_dwordx2 s[40:41], s[0:1], {KA["x"]}')
    a('v_mov_b32 v1, v0')
    a('v_lshrrev_b32 v2, 6, v0')
    a('v_and_b32 v0, 63, v0')
    a('v_readfirstlane_b32 s3, v2')
    RS = 288
    a('s_lshr_b32 s16, s2, 3')
    a('s_and_b32 s17, s2, 7')
    a('s_lshl_b32 s18, s16, 17')
    a('s_lshl_b32 s19, s17, 8')
    a('s_add_u32 s18, s18, s19')
    a('v_lshrrev_b32 v2, 4, v1')
    a('v_and_b32 v3, 15, v1')
    a('v_lshlrev_b32 v4, 11, v2')
    a('v_lshl_add_u32 v4, v3, 4, v4')
    a(f'v_mul_u32_u24 v5, {RS}, v2')
    a('v_lshl_add_u32 v5, v3, 4, v5')
    a('s_lshl_b32 s20, s2, 2')
    a('s_add_u32 s20, s20, s3')
    a('s_lshl_b32 s21, s20, 12')
    a('v_lshlrev_b32 v6, 4, v0')
    a('s_waitcnt lgkmcnt(0)')
    srd(a, 4, 40, 0, 4 * MB)
    for k in range(4):
        a(f'buffer_load_dwordx4 {vr(16+4*k,4)}, v4, s[4:7], s18 offen')
        if k < 3: a('s_add_u32 s18, s18, 32768')
    for k in range(4):
        a(f'buffer_load_dwordx4 {vr(32+4*k,4)}, v6, s[4:7], s21 offen offset:{1024*k}')
    srd(a, 8, 38, WS_ST, 65536)
    for r in range(4):
        a(f'v_mov_b32 v{8+r}, 0')
    a('s_mul_i32 s22, s2, 192')
    a('s_add_u32 s22, s22, 16384')
    a('v_lshlrev_b32 v7, 4, v1')
    a('v_cmp_gt_u32 vcc, 12, v1')
    a('v_mov_b32 v12, 0x7fffff00')
    a('s_nop 0')
    a('v_cndmask_b32 v7, v12, v7, vcc')
    a(f'buffer_store_dwordx4 v[8:11], v7, s[8:11], s22 offen{stflag}')
    for k in range(4):
        a(f's_waitcnt vmcnt({8-k})')
        a(f'ds_write_b128 v5, {vr(16+4*k,4)} offset:{16*k*RS}')
    a('v_bfe_u32 v2, v0, 2, 2')
    a('v_lshrrev_b32 v3, 4, v0')
    a('v_lshl_add_u32 v2, v3, 3, v2')
    a(f'v_mul_u32_u24 v2, {RS}, v2')
    a('v_and_b32 v4, 3, v0')
    a('v_lshl_add_u32 v2, v4, 3, v2')
    a('s_lshl_b32 s22, s3, 6')
    a('v_add_u32 v2, s22, v2')
    a('v_and_b32 v4, 15, v0')
    a('v_lshlrev_b32 v4, 12, v4')
    a('v_lshl_add_u32 v4, v3, 4, v4')
    a('s_lshl_b32 s22, s17, 19')
    a('s_lshl_b32 s23, s3, 17')
    a('s_add_u32 s22, s22, s23')
    a('s_lshl_b32 s23, s16, 7')
    a('s_add_u32 s22, s22, s23')
    a('s_add_u32 s23, s22, 65536')
    srd(a, 12, 38, WS_XT, 4 * MB)
    a('s_waitcnt lgkmcnt(0)')
    a('s_barrier')
    for ct in range(2):
        for sh in range(2):
            for u in range(2):
                a(f'ds_read_b64_tr_b16 {vr(16 + 8*ct + 4*sh + 2*u, 2)}, v2 offset:{(32*sh + 4*u)*RS + ct*32}')
    a('s_waitcnt vmcnt(1)')
    XF = 48
    for k in range(16):
        a(f'v_lshlrev_b32 v{XF+2*k}, 16, v{32+k}')
        a(f'v_and_b32 v{XF+2*k+1}, 0xffff0000, v{32+k}')
    for ct in range(2):
        for sh in range(2):
            a(f's_waitcnt lgkmcnt({6 - 4*ct - 2*sh})')
            a(f'buffer_store_dwordx4 {vr(16+8*ct+4*sh,4)}, v4, s[12:15], s{22+ct} offen offset:{64*sh}{stflag}')
    for row in range(2):
        a(f'v_pk_add_f32 {vr(32+4*row,2)}, {vr(XF+16*row,2)}, {vr(XF+16*row+2,2)}')
        a(f'v_pk_mul_f32 {vr(34+4*row,2)}, {vr(XF+16*row,2)}, {vr(XF+16*row,2)}')
    for k in range(1, 8):
        for row in range(2):
            if k > 1:
                a(f'v_pk_add_f32 {vr(32+4*row,2)}, {vr(32+4*row,2)}, {vr(XF+16*row+2*k,2)}')
            a(f'v_pk_fma_f32 {vr(34+4*row,2)}, {vr(XF+16*row+2*k,2)}, {vr(XF+16*row+2*k,2)}, {vr(34+4*row,2)}')
    for k in range(4):
        a(f'v_add_f32 v{40+k}, v{32+2*k}, v{32+2*k+1}')
    wave_sum(a, [40, 41, 42, 43], [44, 45, 46, 47])
    a('s_lshl_b32 s22, s20, 4')
    a('v_cmp_eq_u32 vcc, 0, v0')
    a('s_nop 1')
    a('v_cndmask_b32 v7, v12, v0, vcc')
    a(f'buffer_store_dwordx4 v[40:43], v7, s[8:11], s22 offen{stflag}')
    if touch:
        srd(a, 4, 38, 0, 46 * MB)
        a(f's_mov_b32 s22, {touch}')
        a('v_mul_lo_u32 v2, v1, s22')
        a('buffer_load_dword v3, v2, s[4:7], 0 offen')
    a('s_endpgm')
    if pf: prefetch_body(a, L_end, *pf, cond_layer=False)
    else:
        a.place(L_end); a('s_endpgm')
    a.end_kernel(name, 80, 96)
    return name, 64 * RS

def n2_kernel(a, stflag=''):
    names = ['n2a_kernel', 'n2b_kernel']
    body = a.label('n2_body')
    entry_stubs(a, names, body, 80)
    L_end = a.label('end')
    a('s_cmp_ge_u32 s2, 256')
    a(f's_cbranch_scc1 {L_end}')
    a(f's_load_dwordx2 s[38:39], s[0:1], {KA["ws"]}')
    a('v_lshlrev_b32 v2, 6, v0')
    a('v_lshlrev_b32 v3, 4, v0')
    a('s_lshl_b32 s25, s33, 14')
    a(f's_add_u32 s25, s25, {WS_ST + 2*16384}')
    a(f's_mul_i32 s16, s2, {7*4096}')
    a('s_mov_b32 s17, s16')
    a('s_waitcnt lgkmcnt(0)')
    srd(a, 4, 38, 's25', 16384)
    srd(a, 8, 38, WS_ZT + 1792 * 4096, 1792 * 4096, True)
    ST = 4; XD = 20; SC = 48; TMP = 64
    for q in range(4):
        a(f'buffer_load_dwordx4 {vr(ST+4*q,4)}, v2, s[4:7], 0 offen offset:{16*q}')
    for e in range(7):
        a(f'buffer_load_dwordx4 {vr(XD+4*e,4)}, v3, s[8:11], s16 offen')
        a('s_add_u32 s16, s16, 4096')
    a('s_waitcnt vmcnt(7)')
    scale_shift(a, ST, SC, 1792)
    for e in range(7):
        a('s_waitcnt vmcnt(6)')
        for d in range(4):
            a(f'v_lshlrev_b32 v{TMP+2*d}, 16, v{XD+4*e+d}')
            a(f'v_and_b32 v{TMP+2*d+1}, 0xffff0000, v{XD+4*e+d}')
        for d in range(4):
            a(f'v_pk_fma_f32 {vr(TMP+2*d,2)}, {vr(TMP+2*d,2)}, {vr(SC+2*d,2)}, {vr(SC+8+2*d,2)}')
        for d in range(4):
            a(f'v_cvt_pk_bf16_f32 v{XD+4*e+d}, v{TMP+2*d}, v{TMP+2*d+1}')
        a(f'buffer_store_dwordx4 {vr(XD+4*e,4)}, v3, s[8:11], s17 offen{stflag}')
        a('s_add_u32 s17, s17, 4096')
    a.place(L_end)
    a('s_endpgm')
    return names
```

```python
from fft import *

def mf16(d, x, y, first):
    return f'v_mfma_f32_16x16x32_f16 {vr(d,4)}, {vr(x,4)}, {vr(y,4)}, {"0" if first else vr(d,4)}'

def angles(a, dst, cnt, vn, vk, inv):
    a(f'v_mul_f32 v{dst+cnt-1}, {f32(inv)}, v{vn}')
    a(f'v_mul_f32 v{dst}, v{dst+cnt-1}, v{vk}')
    for r in range(1, cnt):
        if r < cnt - 1:
            a(f'v_add_f32 v{dst+r}, v{dst+r-1}, v{dst+cnt-1}')
        else:
            a(f'v_add_f32 v{dst+r}, v{dst+r-1}, v{dst+cnt-1}')

def a1v2_kernel(a, stflag='', pf=None, stamp=False):
    names = ['a1a_kernel', 'a1b_kernel']
    body = a.label('a1_body')
    entry_stubs(a, names, body, 256 if stamp else 128)
    L_end = a.label('end')
    RS = 160; CS = 32 * RS
    CB = 4 * CS
    TWB = CB; C64B = CB + 16384; C32B = C64B + 8192
    P0 = C32B + 4096
    a('s_cmp_ge_u32 s2, 256')
    a(f's_cbranch_scc1 {L_end}')
    a(f's_load_dwordx2 s[38:39], s[0:1], {KA["ws"]}')
    st = Stamper(a, stamp); st.init(); st()
    a('v_mov_b32 v1, v0')
    a('v_lshrrev_b32 v2, 6, v0')
    a('v_and_b32 v0, 63, v0')
    a('v_readfirstlane_b32 s3, v2')
    a('v_lshlrev_b32 v2, 5, v1')
    a('v_lshlrev_b32 v3, 3, v1')
    a('s_lshr_b32 s16, s2, 5')
    a('s_lshl_b32 s16, s16, 7')
    a('s_and_b32 s17, s2, 31')
    a('s_add_u32 s16, s16, s17')
    a('s_lshl_b32 s16, s16, 12')
    a('s_lshl_b32 s25, s33, 14')
    a(f's_add_u32 s25, s25, {WS_ST}')
    a('s_waitcnt lgkmcnt(0)')
    srd(a, 4, 38, 's25', 16384)
    srd(a, 8, 38, WS_XT, 4 * MB)
    ST = 16; XD = 24; SC = 32; TMP = 40
    for q in range(2):
        a(f'buffer_load_dwordx4 {vr(ST+4*q,4)}, v2, s[4:7], 0 offen offset:{16*q}')
    for e in range(4):
        a(f'buffer_load_dwordx2 {vr(XD+2*e,2)}, v3, s[8:11], s16 offen')
        if e < 3: a(f's_add_u32 s16, s16, {32*4096}')
    a('s_and_b32 s20, s3, 1')
    a('s_bfe_u32 s21, s3, 0x10001')
    a('s_lshr_b32 s22, s3, 2')
    a('v_and_b32 v4, 15, v0')
    a('v_lshrrev_b32 v5, 4, v0')
    a('v_lshlrev_b32 v5, 2, v5')
    a('s_lshl_b32 s23, s20, 4')
    a('v_add_u32 v6, s23, v4')
    a('v_cvt_f32_u32 v6, v6')
    K = 48
    a('s_lshr_b32 s24, s3, 1')
    a('s_lshl_b32 s24, s24, 4')
    a('v_add_u32 v7, s24, v5')
    a('v_cvt_f32_u32 v7, v7')
    angles(a, K + 4, 4, 6, 7, -1.0 / 2048)
    angles(a, K + 12, 4, 6, 7, -1.0 / 64)
    a('s_lshl_b32 s24, s22, 4')
    a('s_lshl_b32 s26, s21, 1')
    a('s_add_u32 s24, s24, s26')
    a('v_add_u32 v7, s24, v5')
    a('v_cvt_f32_u32 v7, v7')
    angles(a, K + 18, 2, 6, 7, -1.0 / 32)
    for r in range(4):
        a(f'v_cos_f32 v{K+r}, v{K+4+r}')
        a(f'v_sin_f32 v{K+4+r}, v{K+4+r}')
    for r in range(4):
        a(f'v_cos_f32 v{K+8+r}, v{K+12+r}')
        a(f'v_sin_f32 v{K+12+r}, v{K+12+r}')
    for r in range(2):
        a(f'v_cos_f32 v{K+16+r}, v{K+18+r}')
        a(f'v_sin_f32 v{K+18+r}, v{K+18+r}')
    a('v_lshlrev_b32 v8, 4, v0')
    a('s_lshl_b32 s24, s20, 2')
    a('s_lshr_b32 s26, s3, 1')
    a('s_add_u32 s24, s24, s26')
    a('s_lshl_b32 s24, s24, 11')
    a('v_add_u32 v9, s24, v8')
    a(f'ds_write_b128 v9, {vr(K,4)} offset:{TWB}')
    a(f'ds_write_b128 v9, {vr(K+4,4)} offset:{TWB+1024}')
    for r in range(8):
        a(f'v_mul_f32 v{K+8+r}, {f32(1.0/16)}, v{K+8+r}')
    for r in range(4):
        a(f'v_cvt_pk_f16_f32 v{K+20+r}, v{K+8+2*r}, v{K+8+2*r+1}')
    a(f'v_cvt_pk_f16_f32 v{K+24}, v{K+16}, v{K+17}')
    a(f'v_cvt_pk_f16_f32 v{K+25}, v{K+18}, v{K+19}')
    a('s_lshl_b32 s24, s22, 1')
    a('s_add_u32 s24, s24, s20')
    a('s_lshl_b32 s24, s24, 11')
    a('s_lshl_b32 s26, s21, 3')
    a('s_add_u32 s24, s24, s26')
    a('v_add_u32 v9, s24, v8')
    a(f'ds_write_b64 v9, {vr(K+20,2)} offset:{C64B}')
    a(f'ds_write_b64 v9, {vr(K+22,2)} offset:{C64B+1024}')
    a('s_lshl_b32 s24, s20, 11')
    a('s_lshl_b32 s26, s22, 3')
    a('s_add_u32 s24, s24, s26')
    a('s_lshl_b32 s26, s21, 2')
    a('s_add_u32 s24, s24, s26')
    a('v_add_u32 v9, s24, v8')
    a(f'ds_write_b32 v9, v{K+24} offset:{C32B}')
    a(f'ds_write_b32 v9, v{K+25} offset:{C32B+1024}')
    a('v_lshrrev_b32 v6, 4, v1')
    a(f'v_mul_u32_u24 v6, {RS}, v6')
    a('v_and_b32 v7, 15, v1')
    a('v_lshl_add_u32 v6, v7, 3, v6')
    st()
    a('s_waitcnt vmcnt(4)')
    st()
    scale_shift(a, ST, SC, 1024, cnt=4)
    for e in range(4):
        a(f's_waitcnt vmcnt({3-e})')
        for d in range(2):
            a(f'v_lshlrev_b32 v{TMP+2*d}, 16, v{XD+2*e+d}')
            a(f'v_and_b32 v{TMP+2*d+1}, 0xffff0000, v{XD+2*e+d}')
        for d in range(4):
            a(f'v_fma_f32 v{TMP+d}, v{TMP+d}, v{SC+d}, v{SC+4+d}')
        for d in range(2):
            a(f'v_cvt_pk_f16_f32 v{XD+2*e+d}, v{TMP+2*d}, v{TMP+2*d+1}')
        a(f'ds_write_b64 v6, {vr(XD+2*e,2)} offset:{e*CS}')
    a('v_lshrrev_b32 v6, 2, v0')
    a(f'v_mul_u32_u24 v6, {RS}, v6')
    a('v_and_b32 v7, 3, v0')
    a('v_lshl_add_u32 v6, v7, 3, v6')
    a('s_lshr_b32 s27, s3, 1')
    a(f's_mul_i32 s16, s27, {CS}')
    a('v_add_u32 v6, s16, v6')
    a('s_lshl_b32 s24, s20, 11')
    a('v_add_u32 v9, s24, v8')
    a('s_lshl_b32 s24, s20, 13')
    a('v_add_u32 v10, s24, v8')
    a('s_waitcnt lgkmcnt(0)')
    st()
    a('s_barrier')
    st()
    AF = 16; C32 = 32; S32 = 36; TW = 40; C64 = 72; YR = 104; YI = 16
    YI = 12 + 0
    a(f'ds_read_b128 {vr(C32,4)}, v9 offset:{C32B}')
    a(f'ds_read_b128 {vr(S32,4)}, v9 offset:{C32B+1024}')
    for mt in range(4):
        for u in range(2):
            a(f'ds_read_b64_tr_b16 {vr(AF + 4*mt + 2*u, 2)}, v6 offset:{u*16*RS + mt*32}')
    for k in range(8):
        a(f'ds_read_b128 {vr(TW+4*k,4)}, v10 offset:{TWB + k*1024}')
    for mt in range(4):
        a(f's_waitcnt lgkmcnt({8 + 6 - 2*mt})')
        a(mf16(YR + 4*mt, AF + 4*mt, C32, True))
        a(mf16(AF + 4*mt, AF + 4*mt, S32, True))
    YI = AF
    for k in range(8):
        a(f'ds_read_b128 {vr(C64+4*k,4)}, v8 offset:{C64B + k*1024}')
    a('s_nop 3')
    st()
    a(f'v_add_f32 v4, v{YR}, v{YR+2}')
    a(f'v_add_f32 v5, v{YR+1}, v{YR+3}')
    for x in range(4, 16, 2):
        a(f'v_add_f32 v4, v4, v{YR+x}')
        a(f'v_add_f32 v5, v5, v{YR+x+1}')
    a('v_sub_f32 v4, v4, v5')
    a('s_waitcnt lgkmcnt(8)')
    PR = 120; PI = 32; NI = TW
    T = 10
    for mt in range(4):
        for hh in range(2):
            x = 4 * mt + 2 * hh
            tr = TW + 8 * mt + 2 * hh; ti = tr + 4
            for z in range(2):
                a(f'v_mul_f32 v{T+z}, v{YR+x+z}, v{tr+z}')
                a(f'v_mul_f32 v{T+2+z}, v{YR+x+z}, v{ti+z}')
            for z in range(2):
                a(f'v_fma_f32 v{T+z}, -v{YI+x+z}, v{ti+z}, v{T+z}')
                a(f'v_fma_f32 v{T+2+z}, v{YI+x+z}, v{tr+z}, v{T+2+z}')
            a(f'v_cvt_pk_f16_f32 v{PR+x//2}, v{T}, v{T+1}')
            a(f'v_cvt_pk_f16_f32 v{PI+x//2}, v{T+2}, v{T+3}')
            a(f'v_cvt_pk_f16_f32 v{YI+x//2}, -v{T+2}, -v{T+3}')
    NI = YI
    for q in range(4):
        a(f'v_readlane_b32 s{16+q}, v4, {16*q}')
    a('s_waitcnt lgkmcnt(0)')
    st()
    ZR = YR; ZI = YR + 8
    for j in range(2):
        for nt in range(2):
            C = C64 + (j * 2 + nt) * 8; S = C + 4
            a(mf16(ZR + 4*nt, PR + 4*j, C, j == 0))
            a(mf16(ZI + 4*nt, PR + 4*j, S, j == 0))
        for nt in range(2):
            C = C64 + (j * 2 + nt) * 8; S = C + 4
            a(mf16(ZR + 4*nt, NI + 4*j, S, False))
            a(mf16(ZI + 4*nt, PI + 4*j, C, False))
    a('v_mov_b32 v4, s16')
    for q in range(1, 4):
        a(f'v_add_f32 v4, s{16+q}, v4')
    a(f'v_mul_f32 v4, {f32(1.0/16)}, v4')
    a('v_and_b32 v6, 15, v0')
    a('v_mul_u32_u24 v6, 144, v6')
    a('v_lshrrev_b32 v7, 4, v0')
    a('v_lshl_add_u32 v6, v7, 4, v6')
    a('s_mul_i32 s16, s27, 4608')
    a('s_lshl_b32 s17, s20, 6')
    a('s_add_u32 s16, s16, s17')
    a('v_add_u32 v6, s16, v6')
    a('v_lshrrev_b32 v7, 5, v1')
    a('v_mul_u32_u24 v7, 144, v7')
    a('v_and_b32 v9, 31, v1')
    a('v_lshl_add_u32 v7, v9, 2, v7')
    a('v_lshrrev_b32 v9, 2, v1')
    a('v_lshlrev_b32 v9, 14, v9')
    a('v_and_b32 v10, 3, v1')
    a('v_lshl_add_u32 v9, v10, 4, v9')
    a('s_lshl_b32 s16, s2, 6')
    a(f's_add_u32 s17, s16, {2*MB}')
    srd(a, 8, 38, WS_V, 4 * MB)
    a('s_xor_b32 s18, s20, 1')
    a('s_mov_b32 s19, 0')
    a(f'v_cndmask_b32 v{ZI}, v{ZI}, v4, s[18:19]')
    W = 32
    for x in range(8):
        a(f'v_cvt_pk_f16_f32 v{W+x}, v{ZR+x}, v{ZI+x}')
    for nt in range(2):
        a(f'ds_write_b128 v6, {vr(W+4*nt,4)} offset:{P0 + nt*16*144}')
    a('s_waitcnt lgkmcnt(0)')
    st()
    a('s_barrier')
    O = 40
    for q in range(2):
        for e in range(4):
            a(f'ds_read_b32 v{O+4*q+e}, v7 offset:{P0 + e*4608 + q*16*144}')
    for q in range(2):
        a(f's_waitcnt lgkmcnt({4-4*q})')
        a(f'buffer_store_dwordx4 {vr(O+4*q,4)}, v9, s[8:11], s{16+q} offen{stflag}')
    st()
    if stamp: a('s_waitcnt vmcnt(0)')
    st()
    st.dump(3, 's3')
    a('s_endpgm')
    if pf: prefetch_body(a, L_end, *pf, nthr=512)
    else:
        a.place(L_end); a('s_endpgm')
    return names, P0 + 4 * 4608

def a2v2_kernel(a, stflag='', pf=None, stamp=False):
    names = ['a2a_kernel', 'a2b_kernel']
    body = a.label('a2_body')
    entry_stubs(a, names, body, 256 if stamp else 128)
    L_end = a.label('end')
    VB = 0
    CB = 16384
    TWB = CB + 4096
    YB0 = TWB + 8192
    a('s_cmp_ge_u32 s2, 256')
    a(f's_cbranch_scc1 {L_end}')
    a(f's_load_dwordx2 s[38:39], s[0:1], {KA["ws"]}')
    a(f's_load_dwordx2 s[40:41], s[0:1], {KA["x"]}')
    st = Stamper(a, stamp); st.init(); st()
    a('v_lshrrev_b32 v2, 6, v0')
    a('v_and_b32 v0, 63, v0')
    a('s_nop 0')
    a('v_readfirstlane_b32 s3, v2')
    a('v_lshlrev_b32 v8, 4, v0')
    a('v_lshrrev_b32 v1, 4, v0')
    a('v_xor_b32 v1, v1, v0')
    a('v_and_b32 v1, 3, v1')
    a('v_and_b32 v2, 0xfc, v0')
    a('v_or_b32 v1, v1, v2')
    a('v_lshlrev_b32 v1, 4, v1')
    a('s_and_b32 s20, s3, 1')
    a('s_lshr_b32 s27, s3, 1')
    a('s_lshl_b32 s16, s2, 2')
    a('s_add_u32 s16, s16, s27')
    a('s_sub_u32 s19, 2048, s16')
    a('s_cmp_eq_u32 s16, 0')
    a('s_cselect_b32 s19, 1024, s19')
    a('s_cmp_eq_u32 s20, 0')
    a('s_cselect_b32 s19, s16, s19')
    a('s_lshl_b32 s21, s19, 11')
    a('s_lshl_b32 s17, s2, 14')
    a('s_lshl_b32 s18, s3, 11')
    a('s_add_u32 s17, s17, s18')
    a('s_mov_b32 m0, s18')
    a('s_waitcnt lgkmcnt(0)')
    srd(a, 4, 38, WS_V, 4 * MB)
    st()
    a('buffer_load_dwordx4 v1, s[4:7], s17 offen lds')
    a('buffer_load_dwordx4 v1, s[4:7], s17 offen offset:1024 lds')
    st()
    a(f's_add_u32 s24, s38, {WS_X2}')
    a('s_addc_u32 s25, s39, 0')
    a('s_cmp_eq_u32 s33, 0')
    a('s_cselect_b32 s8, s40, s24')
    a('s_cselect_b32 s9, s41, s25')
    a(f's_mov_b32 s10, {4*MB}')
    a('s_mov_b32 s11, 0x20000')
    X = 112
    for k in range(2):
        a(f'buffer_load_dwordx4 {vr(X+4*k,4)}, v8, s[8:11], s21 offen offset:{1024*k}')
    st()
    a('s_bfe_u32 s22, s3, 0x10001')
    a('s_lshr_b32 s23, s3, 2')
    a('v_and_b32 v4, 15, v0')
    a('v_lshrrev_b32 v5, 4, v0')
    a('s_lshl_b32 s24, s20, 4')
    a('v_add_u32 v6, s24, v4')
    a('v_cvt_f32_u32 v6, v6')
    a('s_lshl_b32 s24, s23, 4')
    a('s_lshl_b32 s26, s22, 1')
    a('s_add_u32 s24, s24, s26')
    a('v_lshl_add_u32 v7, v5, 2, s24')
    a('v_cvt_f32_u32 v7, v7')
    K = 16
    angles(a, K + 2, 2, 6, 7, -1.0 / 32)
    angles(a, K + 6, 2, 6, 7, -1.0 / 1024)
    for r in range(2):
        a(f'v_cos_f32 v{K+r}, v{K+2+r}')
        a(f'v_sin_f32 v{K+2+r}, v{K+2+r}')
        a(f'v_cos_f32 v{K+4+r}, v{K+6+r}')
        a(f'v_sin_f32 v{K+6+r}, v{K+6+r}')
    a('s_lshl_b32 s24, s20, 11')
    a('s_lshl_b32 s26, s23, 3')
    a('s_add_u32 s24, s24, s26')
    a('s_lshl_b32 s26, s22, 2')
    a('s_add_u32 s24, s24, s26')
    a('v_add_u32 v9, s24, v8')
    a(f'v_cvt_pk_f16_f32 v{K+8}, v{K}, v{K+1}')
    a(f'v_cvt_pk_f16_f32 v{K+9}, v{K+2}, v{K+3}')
    a(f'ds_write_b32 v9, v{K+8} offset:{CB}')
    a(f'ds_write_b32 v9, v{K+9} offset:{CB+1024}')
    a('s_lshl_b32 s24, s20, 12')
    a('s_lshl_b32 s26, s23, 11')
    a('s_add_u32 s24, s24, s26')
    a('s_lshl_b32 s26, s22, 3')
    a('s_add_u32 s24, s24, s26')
    a('v_add_u32 v9, s24, v8')
    a(f'ds_write_b64 v9, {vr(K+4,2)} offset:{TWB}')
    a(f'ds_write_b64 v9, {vr(K+6,2)} offset:{TWB+1024}')
    a('v_lshrrev_b32 v6, 2, v4')
    a('v_xor_b32 v6, s27, v6')
    a('v_lshlrev_b32 v6, 4, v6')
    a('v_lshl_add_u32 v6, v4, 6, v6')
    a('v_lshl_add_u32 v6, v5, 11, v6')
    a('s_lshl_b32 s24, s20, 11')
    a('v_add_u32 v9, s24, v8')
    a('v_xor_b32 v10, 2048, v9')
    a('s_lshl_b32 s24, s20, 12')
    a('v_add_u32 v11, s24, v8')
    a('s_mov_b32 s22, 0x05040100')
    a('s_mov_b32 s23, 0x07060302')
    st()
    a('s_waitcnt vmcnt(2) lgkmcnt(0)')
    st()
    a('s_barrier')
    st()
    GG = 16; C0 = 32; S0 = 36; C1 = 40; S1 = 44; TW = 48; AR = 64; AI = 72; P = 80; R = 88; S = 96; Q = 104
    for mt in range(2):
        for u in range(2):
            a(f'ds_read_b128 {vr(GG + 8*mt + 4*u, 4)}, v6 offset:{VB + u*8192 + mt*1024}')
    a(f'ds_read_b128 {vr(C0,4)}, v9 offset:{CB}')
    a(f'ds_read_b128 {vr(S0,4)}, v9 offset:{CB+1024}')
    for k in range(4):
        a(f'ds_read_b128 {vr(TW+4*k,4)}, v11 offset:{TWB + k*1024}')
    a(f'ds_read_b128 {vr(C1,4)}, v10 offset:{CB}')
    a(f'ds_read_b128 {vr(S1,4)}, v10 offset:{CB+1024}')
    for mt in range(2):
        a(f's_waitcnt lgkmcnt({10 - 2*mt})')
        for k in range(4):
            g = GG + 8 * mt + 2 * k
            a(f'v_perm_b32 v{AR+4*mt+k}, v{g+1}, v{g}, s22')
            a(f'v_perm_b32 v{AI+4*mt+k}, v{g+1}, v{g}, s23')
    a('s_waitcnt lgkmcnt(6)')
    for mt in range(2):
        a(mf16(P + 4*mt, AR + 4*mt, C0, True))
        a(mf16(R + 4*mt, AR + 4*mt, S0, True))
        a(mf16(S + 4*mt, AI + 4*mt, C0, True))
        a(mf16(Q + 4*mt, AI + 4*mt, S0, True))
    a('v_mul_u32_u24 v6, 144, v4')
    a('v_lshl_add_u32 v6, v5, 4, v6')
    a('s_mul_i32 s24, s27, 9216')
    a('s_lshl_b32 s26, s20, 6')
    a('s_add_u32 s24, s24, s26')
    a('s_mul_i32 s26, s20, 2304')
    a('s_add_u32 s25, s24, s26')
    a('s_sub_u32 s24, s24, s26')
    a('s_add_u32 s24, s24, 2304')
    a('v_add_u32 v7, s24, v6')
    a('v_add_u32 v6, s25, v6')
    a('v_lshrrev_b32 v9, 2, v0')
    a('v_mul_u32_u24 v9, 144, v9')
    a('v_and_b32 v10, 3, v0')
    a('v_lshl_add_u32 v9, v10, 5, v9')
    a('s_mul_i32 s24, s3, 4608')
    a('v_add_u32 v9, s24, v9')
    a('s_waitcnt lgkmcnt(2)')
    st()
    T = GG
    for x in range(8):
        tr = TW + 8 * (x >> 2) + (x & 3); ti = tr + 4
        a(f'v_mul_f32 v{T+2*x}, v{P+x}, v{ti}')
        a(f'v_mul_f32 v{T+2*x+1}, v{Q+x}, v{ti}')
        a(f'v_mul_f32 v{P+x}, v{P+x}, v{tr}')
        a(f'v_mul_f32 v{Q+x}, v{Q+x}, v{tr}')
        a(f'v_fma_f32 v{P+x}, -v{R+x}, v{ti}, v{P+x}')
        a(f'v_fma_f32 v{Q+x}, v{S+x}, v{ti}, v{Q+x}')
        a(f'v_fma_f32 v{R+x}, v{R+x}, v{tr}, v{T+2*x}')
        a(f'v_fma_f32 v{S+x}, v{S+x}, v{tr}, -v{T+2*x+1}')
    RA = AR; NA = AR + 4; RB = AI; NB = AI + 4
    L0 = a.label('t0'); L1 = a.label('tj')
    a('s_cmp_eq_u32 s16, 0')
    a(f's_cbranch_scc1 {L0}')
    for x in range(0, 8, 2):
        for z in range(2):
            a(f'v_sub_f32 v{T+z}, v{P+x+z}, v{Q+x+z}')
            a(f'v_add_f32 v{T+2+z}, v{P+x+z}, v{Q+x+z}')
            a(f'v_add_f32 v{T+4+z}, v{R+x+z}, v{S+x+z}')
            a(f'v_sub_f32 v{T+6+z}, v{S+x+z}, v{R+x+z}')
        a(f'v_cvt_pk_f16_f32 v{RA+x//2}, v{T}, v{T+1}')
        a(f'v_cvt_pk_f16_f32 v{RB+x//2}, v{T+2}, v{T+3}')
        a(f'v_cvt_pk_f16_f32 v{NA+x//2}, -v{T+4}, -v{T+5}')
        a(f'v_cvt_pk_f16_f32 v{NB+x//2}, v{T+6}, v{T+7}')
    a(f's_branch {L1}')
    a.place(L0)
    for x in range(0, 8, 2):
        a(f'v_cvt_pk_f16_f32 v{RA+x//2}, v{P+x}, v{P+x+1}')
        a(f'v_cvt_pk_f16_f32 v{NA+x//2}, -v{R+x}, -v{R+x+1}')
        a(f'v_cvt_pk_f16_f32 v{RB+x//2}, v{S+x}, v{S+x+1}')
        a(f'v_cvt_pk_f16_f32 v{NB+x//2}, -v{Q+x}, -v{Q+x+1}')
    a.place(L1)
    a('s_waitcnt lgkmcnt(0)')
    st()
    Y = lambda row, lt: P + 8 * row + 4 * lt
    for row, (rr, nn) in enumerate(((RA, NA), (RB, NB))):
        for lt, (C, Sx) in enumerate(((C0, S0), (C1, S1))):
            a(mf16(Y(row, lt), rr, C, True))
    for row, (rr, nn) in enumerate(((RA, NA), (RB, NB))):
        for lt, (C, Sx) in enumerate(((C0, S0), (C1, S1))):
            a(mf16(Y(row, lt), nn, Sx, False))
    srd(a, 4, 38, WS_X1, 4 * MB)
    srd(a, 12, 38, WS_XN1, 4 * MB)
    for row in range(2):
        for lt in range(2):
            a(f'ds_write_b128 v{6+lt}, {vr(Y(row, lt),4)} offset:{YB0 + row*4608}')
    XF = 16
    a('s_waitcnt vmcnt(0)')
    for k in range(8):
        a(f'v_lshlrev_b32 v{XF+2*k}, 16, v{X+k}')
        a(f'v_and_b32 v{XF+2*k+1}, 0xffff0000, v{X+k}')
    a('s_waitcnt lgkmcnt(0)')
    st()
    a('s_barrier')
    st()
    YF = 32
    for hf in range(2):
        for k in range(2):
            a(f'ds_read_b128 {vr(YF + 8*hf + 4*k, 4)}, v9 offset:{YB0 + hf*16*144 + 16*k}')
    a('v_mov_b32 v4, 16.0')
    for hf in range(2):
        a(f's_waitcnt lgkmcnt({2-2*hf})')
        for k in range(8):
            a(f'v_fma_f32 v{YF+8*hf+k}, v{YF+8*hf+k}, v4, v{XF+8*hf+k}')
        for k in range(4):
            a(f'v_cvt_pk_bf16_f32 v{X+4*hf+k}, v{YF+8*hf+2*k}, v{YF+8*hf+2*k+1}')
        a(f'buffer_store_dwordx4 {vr(X+4*hf,4)}, v8, s[4:7], s21 offen offset:{1024*hf}{stflag}')
    for k in range(8):
        a(f'v_lshlrev_b32 v{XF+2*k}, 16, v{X+k}')
        a(f'v_and_b32 v{XF+2*k+1}, 0xffff0000, v{X+k}')
    st()
    a(f'v_add_f32 v4, v{XF}, v{XF+1}')
    a(f'v_add_f32 v5, v{XF+2}, v{XF+3}')
    for k in range(4, 16, 2):
        a(f'v_add_f32 v4, v4, v{XF+k}')
        a(f'v_add_f32 v5, v5, v{XF+k+1}')
    a('v_add_f32 v4, v4, v5')
    wave_sum(a, 4, 5)
    a(f'v_mul_f32 v4, {f32(-1.0/1024)}, v4')
    for k in range(16):
        a(f'v_add_f32 v{XF+k}, v{XF+k}, v4')
    a(f'v_mul_f32 v6, v{XF}, v{XF}')
    a(f'v_mul_f32 v7, v{XF+1}, v{XF+1}')
    for k in range(2, 16, 2):
        a(f'v_fma_f32 v6, v{XF+k}, v{XF+k}, v6')
        a(f'v_fma_f32 v7, v{XF+k+1}, v{XF+k+1}, v7')
    a('v_add_f32 v6, v6, v7')
    wave_sum(a, 6, 7)
    a(f'v_mov_b32 v5, {f32(1e-5)}')
    a(f'v_fmamk_f32 v6, v6, {f32(1.0/1024)}, v5')
    a('v_rsq_f32 v6, v6')
    a('s_nop 0')
    for k in range(16):
        a(f'v_mul_f32 v{XF+k}, v{XF+k}, v6')
    for k in range(8):
        a(f'v_cvt_pk_bf16_f32 v{YF+k}, v{XF+2*k}, v{XF+2*k+1}')
    for hf in range(2):
        a(f'buffer_store_dwordx4 {vr(YF+4*hf,4)}, v8, s[12:15], s21 offen offset:{1024*hf}{stflag}')
    st()
    if stamp: a('s_waitcnt vmcnt(0)')
    st()
    st.dump(4, 's3')
    a('s_endpgm')
    if pf: prefetch_body(a, L_end, *pf, nthr=512)
    else:
        a.place(L_end); a('s_endpgm')
    return names, YB0 + 8 * 4608
```

```python
from fft2 import *

def cs_pack(a, C, S, vn, vk0, N, tmp, scale=None):
    a(f'v_mul_f32 v{tmp+8}, {f32(-1.0/N)}, v{vn}')
    a(f'v_mul_f32 v{tmp+9}, v{tmp+8}, v{vk0}')
    for u in range(2):
        for r in range(4):
            k = 16 * u + r
            if k == 0: a(f'v_mov_b32 v{tmp+4}, v{tmp+9}')
            else: a(f'v_fmamk_f32 v{tmp+4+r}, v{tmp+8}, {f32(float(k))}, v{tmp+9}')
        for r in range(4):
            a(f'v_cos_f32 v{tmp+r}, v{tmp+4+r}')
            a(f'v_sin_f32 v{tmp+4+r}, v{tmp+4+r}')
        a('s_nop 0')
        for p in range(2):
            a(f'v_cvt_pk_f16_f32 v{C+2*u+p}, v{tmp+2*p}, v{tmp+2*p+1}')
            a(f'v_cvt_pk_f16_f32 v{S+2*u+p}, v{tmp+4+2*p}, v{tmp+4+2*p+1}')

def tw_regs(a, TW, nmt, vn, vk0, N, tmp):
    a(f'v_mul_f32 v{tmp}, {f32(-1.0/N)}, v{vn}')
    a(f'v_mul_f32 v{tmp+1}, v{tmp}, v{vk0}')
    for mt in range(nmt):
        for r in range(4):
            k = 16 * mt + r
            if k == 0: a(f'v_mov_b32 v{TW+4}, v{tmp+1}')
            else: a(f'v_fmamk_f32 v{TW+8*mt+4+r}, v{tmp}, {f32(float(k))}, v{tmp+1}')
    for mt in range(nmt):
        for r in range(4):
            a(f'v_cos_f32 v{TW+8*mt+r}, v{TW+8*mt+4+r}')
            a(f'v_sin_f32 v{TW+8*mt+4+r}, v{TW+8*mt+4+r}')

def a1v3_kernel(a, stflag='', pf=None, stamp=False):
    names = ['a1a_kernel', 'a1b_kernel']
    body = a.label('a1_body')
    entry_stubs(a, names, body, 256 if stamp else 128)
    L_end = a.label('end')
    RS = 160; CS = 32 * RS
    C64B = 4 * CS
    P0 = C64B + 8192
    a('s_cmp_ge_u32 s2, 256')
    a(f's_cbranch_scc1 {L_end}')
    a(f's_load_dwordx2 s[38:39], s[0:1], {KA["ws"]}')
    st = Stamper(a, stamp); st.init()
    a('v_mov_b32 v1, v0')
    a('v_lshrrev_b32 v2, 6, v0')
    a('v_and_b32 v0, 63, v0')
    a('v_readfirstlane_b32 s3, v2')
    a('v_lshlrev_b32 v2, 5, v1')
    a('v_lshlrev_b32 v3, 3, v1')
    a('s_lshr_b32 s16, s2, 5')
    a('s_lshl_b32 s16, s16, 7')
    a('s_and_b32 s17, s2, 31')
    a('s_add_u32 s16, s16, s17')
    a('s_lshl_b32 s16, s16, 12')
    a('s_lshl_b32 s25, s33, 14')
    a(f's_add_u32 s25, s25, {WS_ST}')
    AF = 16; C32 = 32; S32 = 36; TW = 40; C64 = 72; YR = 104; PR = 120
    ST = 72; XD = 80; SC = 88; TMP = 96; K = 104
    a('s_and_b32 s20, s3, 1')
    a('s_bfe_u32 s21, s3, 0x10001')
    a('s_lshr_b32 s22, s3, 2')
    a('v_and_b32 v4, 15, v0')
    a('v_lshrrev_b32 v5, 4, v0')
    a('v_lshlrev_b32 v5, 2, v5')
    a('s_lshl_b32 s23, s20, 4')
    a('v_add_u32 v6, s23, v4')
    a('v_cvt_f32_u32 v6, v6')
    a('v_lshlrev_b32 v8, 4, v0')
    a('s_lshr_b32 s27, s3, 1')
    a('s_lshl_b32 s24, s27, 4')
    a('v_add_u32 v7, s24, v5')
    a('v_cvt_f32_u32 v7, v7')
    angles(a, K + 4, 4, 6, 7, -1.0 / 64)
    for r in range(4):
        a(f'v_cos_f32 v{K+r}, v{K+4+r}')
        a(f'v_sin_f32 v{K+4+r}, v{K+4+r}')
    a('s_lshl_b32 s24, s22, 1')
    a('s_add_u32 s24, s24, s20')
    a('s_lshl_b32 s24, s24, 11')
    a('s_lshl_b32 s26, s21, 3')
    a('s_add_u32 s24, s24, s26')
    a('v_add_u32 v9, s24, v8')
    for r in range(8):
        a(f'v_mul_f32 v{K+r}, {f32(1.0/16)}, v{K+r}')
    for r in range(4):
        a(f'v_cvt_pk_f16_f32 v{K+8+r}, v{K+2*r}, v{K+2*r+1}')
    a(f'ds_write_b64 v9, {vr(K+8,2)} offset:{C64B}')
    a(f'ds_write_b64 v9, {vr(K+10,2)} offset:{C64B+1024}')
    a('v_cvt_f32_u32 v7, v5')
    cs_pack(a, C32, S32, 6, 7, 32, AF)
    a('s_waitcnt lgkmcnt(0)')
    st()
    srd(a, 4, 38, 's25', 16384)
    srd(a, 8, 38, WS_XT, 4 * MB, True)
    for q in range(2):
        a(f'buffer_load_dwordx4 {vr(ST+4*q,4)}, v2, s[4:7], 0 offen offset:{16*q}')
    for e in range(4):
        a(f'buffer_load_dwordx2 {vr(XD+2*e,2)}, v3, s[8:11], s16 offen')
        if e < 3: a(f's_add_u32 s16, s16, {32*4096}')
    tw_regs(a, TW, 4, 6, 7, 2048, AF)
    a('v_lshrrev_b32 v6, 4, v1')
    a(f'v_mul_u32_u24 v6, {RS}, v6')
    a('v_and_b32 v7, 15, v1')
    a('v_lshl_add_u32 v6, v7, 3, v6')
    a('v_lshrrev_b32 v9, 2, v0')
    a(f'v_mul_u32_u24 v9, {RS}, v9')
    a('v_and_b32 v7, 3, v0')
    a('v_lshl_add_u32 v9, v7, 3, v9')
    a(f's_mul_i32 s16, s27, {CS}')
    a('v_add_u32 v9, s16, v9')
    st()
    a('s_waitcnt vmcnt(4)')
    st()
    scale_shift(a, ST, SC, 1024, cnt=4)
    for e in range(4):
        a(f's_waitcnt vmcnt({3-e})')
        for d in range(2):
            a(f'v_lshlrev_b32 v{TMP+2*d}, 16, v{XD+2*e+d}')
            a(f'v_and_b32 v{TMP+2*d+1}, 0xffff0000, v{XD+2*e+d}')
        for d in range(4):
            a(f'v_fma_f32 v{TMP+d}, v{TMP+d}, v{SC+d}, v{SC+4+d}')
        for d in range(2):
            a(f'v_cvt_pk_f16_f32 v{XD+2*e+d}, v{TMP+2*d}, v{TMP+2*d+1}')
        a(f'ds_write_b64 v6, {vr(XD+2*e,2)} offset:{e*CS}')
    a('s_waitcnt lgkmcnt(0)')
    st()
    a('s_barrier')
    st()
    for mt in range(4):
        for u in range(2):
            a(f'ds_read_b64_tr_b16 {vr(AF + 4*mt + 2*u, 2)}, v9 offset:{u*16*RS + mt*32}')
    for mt in range(4):
        a(f's_waitcnt lgkmcnt({6 - 2*mt})')
        a(mf16(YR + 4*mt, AF + 4*mt, C32, True))
        a(mf16(AF + 4*mt, AF + 4*mt, S32, True))
    YI = AF
    for k in range(8):
        a(f'ds_read_b128 {vr(C64+4*k,4)}, v8 offset:{C64B + k*1024}')
    st()
    PI = 32
    T = 10
    for mt in range(4):
        for hh in range(2):
            x = 4 * mt + 2 * hh
            tr = TW + 8 * mt + 2 * hh; ti = tr + 4
            for z in range(2):
                a(f'v_mul_f32 v{T+z}, v{YR+x+z}, v{tr+z}')
                a(f'v_mul_f32 v{T+2+z}, v{YR+x+z}, v{ti+z}')
            for z in range(2):
                a(f'v_fma_f32 v{T+z}, -v{YI+x+z}, v{ti+z}, v{T+z}')
                a(f'v_fma_f32 v{T+2+z}, v{YI+x+z}, v{tr+z}, v{T+2+z}')
            a(f'v_cvt_pk_f16_f32 v{PR+x//2}, v{T}, v{T+1}')
            a(f'v_cvt_pk_f16_f32 v{PI+x//2}, v{T+2}, v{T+3}')
            a(f'v_cvt_pk_f16_f32 v{YI+x//2}, -v{T+2}, -v{T+3}')
    NI = YI
    a('s_waitcnt lgkmcnt(0)')
    st()
    ZR = TW; ZI = TW + 8
    ms = []
    for j in range(2):
        for nt in range(2):
            C = C64 + (j * 2 + nt) * 8; S = C + 4
            ms.append(mf16(ZR + 4*nt, PR + 4*j, C, j == 0))
            ms.append(mf16(ZI + 4*nt, PR + 4*j, S, j == 0))
        for nt in range(2):
            C = C64 + (j * 2 + nt) * 8; S = C + 4
            ms.append(mf16(ZR + 4*nt, NI + 4*j, S, False))
            ms.append(mf16(ZI + 4*nt, PI + 4*j, C, False))
    f = [f'v_add_f32 v4, v{YR}, v{YR+2}', f'v_add_f32 v5, v{YR+1}, v{YR+3}']
    for x in range(4, 16, 2):
        f += [f'v_add_f32 v4, v4, v{YR+x}', f'v_add_f32 v5, v5, v{YR+x+1}']
    f += ['v_sub_f32 v4, v4, v5',
          'v_and_b32 v6, 15, v0', 'v_mul_u32_u24 v6, 144, v6', 'v_lshrrev_b32 v7, 4, v0', 'v_lshl_add_u32 v6, v7, 4, v6']
    f += [f'v_readlane_b32 s{44+q}, v4, {16*q}' for q in range(4)]
    f += ['s_mul_i32 s16, s27, 4608', 's_lshl_b32 s17, s20, 6', 's_add_u32 s16, s16, s17', 'v_add_u32 v6, s16, v6',
          'v_lshrrev_b32 v7, 5, v1', 'v_mul_u32_u24 v7, 144, v7', 'v_and_b32 v9, 31, v1', 'v_lshl_add_u32 v7, v9, 2, v7',
          'v_lshrrev_b32 v9, 2, v1', 'v_lshlrev_b32 v9, 14, v9', 'v_and_b32 v2, 3, v1', 'v_lshl_add_u32 v9, v2, 4, v9',
          'v_mov_b32 v4, s44', 'v_add_f32 v4, s45, v4', 'v_add_f32 v4, s46, v4', 'v_add_f32 v4, s47, v4', f'v_mul_f32 v4, {f32(1.0/16)}, v4']
    for m in ms:
        a(m)
        for _ in range(2):
            if f: a(f.pop(0))
    for x in f: a(x)
    a('s_lshl_b32 s16, s2, 6')
    a(f's_add_u32 s17, s16, {2*MB}')
    srd(a, 8, 38, WS_V, 4 * MB, True)
    a('s_xor_b32 s18, s20, 1')
    a('s_mov_b32 s19, 0')
    a(f'v_cndmask_b32 v{ZI}, v{ZI}, v4, s[18:19]')
    W = 32
    for x in range(8):
        a(f'v_cvt_pk_f16_f32 v{W+x}, v{ZR+x}, v{ZI+x}')
    for nt in range(2):
        a(f'ds_write_b128 v6, {vr(W+4*nt,4)} offset:{P0 + nt*16*144}')
    a('s_waitcnt lgkmcnt(0)')
    st()
    a('s_barrier')
    O = 56
    for q in range(2):
        for e in range(4):
            a(f'ds_read_b32 v{O+4*q+e}, v7 offset:{P0 + e*4608 + q*16*144}')
    for q in range(2):
        a(f's_waitcnt lgkmcnt({4-4*q})')
        a(f'buffer_store_dwordx4 {vr(O+4*q,4)}, v9, s[8:11], s{16+q} offen{stflag}')
    st()
    if stamp: a('s_waitcnt vmcnt(0)')
    st()
    st.dump(3, 's3')
    a('s_endpgm')
    if pf: prefetch_body(a, L_end, *pf, nthr=512)
    else:
        a.place(L_end); a('s_endpgm')
    return names, P0 + 4 * 4608

def a2v3_kernel(a, stflag='', pf=None, stamp=False):
    names = ['a2a_kernel', 'a2b_kernel']
    body = a.label('a2_body')
    entry_stubs(a, names, body, 256 if stamp else 128)
    L_end = a.label('end')
    VB = 0
    YB0 = 16384
    a('s_cmp_ge_u32 s2, 256')
    a(f's_cbranch_scc1 {L_end}')
    a(f's_load_dwordx2 s[38:39], s[0:1], {KA["ws"]}')
    a(f's_load_dwordx2 s[40:41], s[0:1], {KA["x"]}')
    st = Stamper(a, stamp); st.init()
    a('v_lshrrev_b32 v2, 6, v0')
    a('v_and_b32 v0, 63, v0')
    a('s_nop 0')
    a('v_readfirstlane_b32 s3, v2')
    a('v_lshlrev_b32 v8, 4, v0')
    a('v_lshrrev_b32 v1, 4, v0')
    a('v_xor_b32 v1, v1, v0')
    a('v_and_b32 v1, 3, v1')
    a('v_and_b32 v2, 0xfc, v0')
    a('v_or_b32 v1, v1, v2')
    a('v_lshlrev_b32 v1, 4, v1')
    a('s_and_b32 s20, s3, 1')
    a('s_lshr_b32 s27, s3, 1')
    a('s_lshl_b32 s16, s2, 2')
    a('s_add_u32 s16, s16, s27')
    a('s_sub_u32 s19, 2048, s16')
    a('s_cmp_eq_u32 s16, 0')
    a('s_cselect_b32 s19, 1024, s19')
    a('s_cmp_eq_u32 s20, 0')
    a('s_cselect_b32 s19, s16, s19')
    a('s_lshl_b32 s21, s19, 11')
    a('s_lshl_b32 s17, s2, 14')
    a('s_lshl_b32 s18, s3, 11')
    a('s_add_u32 s17, s17, s18')
    a('s_mov_b32 m0, s18')
    GG = 16; C0 = 32; S0 = 36; C1 = 40; S1 = 44; TW = 48; AR = 64; AI = 72; P = 80; R = 88; S = 96; Q = 104; X = 112
    a('v_and_b32 v4, 15, v0')
    a('v_lshrrev_b32 v5, 4, v0')
    a('s_lshl_b32 s24, s20, 4')
    a('v_add_u32 v6, s24, v4')
    a('v_xor_b32 v9, 16, v6')
    a('v_cvt_f32_u32 v6, v6')
    a('v_cvt_f32_u32 v9, v9')
    a('v_lshlrev_b32 v7, 2, v5')
    a('v_cvt_f32_u32 v7, v7')
    cs_pack(a, C0, S0, 6, 7, 32, GG)
    tw_regs(a, TW, 2, 6, 7, 1024, GG)
    a('s_waitcnt lgkmcnt(0)')
    st()
    srd(a, 4, 38, WS_V, 4 * MB, True)
    a('buffer_load_dwordx4 v1, s[4:7], s17 offen lds')
    a('buffer_load_dwordx4 v1, s[4:7], s17 offen offset:1024 lds')
    srd(a, 44, 38, WS_PS, 512 * 1024, True)
    for r in range(4):
        a(f'v_mov_b32 v{X+r}, -1')
    a('s_lshl_b32 s24, s2, 3')
    a('s_add_u32 s24, s24, s3')
    a('s_lshl_b32 s24, s24, 8')
    a('v_cmp_gt_u32 vcc, 16, v0')
    a('v_mov_b32 v12, 0x7fffff00')
    a('s_nop 0')
    a('v_cndmask_b32 v12, v12, v8, vcc')
    a(f'buffer_store_dwordx4 {vr(X,4)}, v12, s[44:47], s24 offen{stflag}')
    cs_pack(a, C1, S1, 9, 7, 32, GG)
    a(f's_add_u32 s24, s38, {WS_X2}')
    a('s_addc_u32 s25, s39, 0')
    a('s_cmp_eq_u32 s33, 0')
    a('s_cselect_b32 s8, s40, s24')
    a('s_cselect_b32 s9, s41, s25')
    a(f's_mov_b32 s10, {4*MB}')
    a('s_mov_b32 s11, 0x20000')
    a('v_lshrrev_b32 v10, 2, v4')
    a('v_xor_b32 v10, s27, v10')
    a('v_lshlrev_b32 v10, 4, v10')
    a('v_lshl_add_u32 v10, v4, 6, v10')
    a('v_lshl_add_u32 v10, v5, 11, v10')
    a('s_mov_b32 s22, 0x05040100')
    a('s_mov_b32 s23, 0x07060302')
    a('v_mul_u32_u24 v6, 144, v4')
    a('v_lshl_add_u32 v6, v5, 4, v6')
    a('s_mul_i32 s24, s27, 9216')
    a('s_lshl_b32 s26, s20, 6')
    a('s_add_u32 s24, s24, s26')
    a('s_mul_i32 s26, s20, 2304')
    a('s_add_u32 s25, s24, s26')
    a('s_sub_u32 s24, s24, s26')
    a('s_add_u32 s24, s24, 2304')
    a('v_add_u32 v7, s24, v6')
    a('v_add_u32 v6, s25, v6')
    a('v_lshrrev_b32 v9, 2, v0')
    a('v_mul_u32_u24 v9, 144, v9')
    a('v_and_b32 v11, 3, v0')
    a('v_lshl_add_u32 v9, v11, 5, v9')
    a('s_mul_i32 s24, s3, 4608')
    a('v_add_u32 v9, s24, v9')
    srd(a, 4, 38, WS_X1, 4 * MB, True)
    srd(a, 12, 38, WS_XN1, 4 * MB, True)
    st()
    a('s_waitcnt vmcnt(1)')
    st()
    a('s_barrier')
    st()
    for mt in range(2):
        for u in range(2):
            a(f'ds_read_b128 {vr(GG + 8*mt + 4*u, 4)}, v10 offset:{VB + u*8192 + mt*1024}')
    for k in range(2):
        a(f'buffer_load_dwordx4 {vr(X+4*k,4)}, v8, s[8:11], s21 offen offset:{1024*k}')
    for mt in range(2):
        a(f's_waitcnt lgkmcnt({2 - 2*mt})')
        for k in range(4):
            g = GG + 8 * mt + 2 * k
            a(f'v_perm_b32 v{AR+4*mt+k}, v{g+1}, v{g}, s22')
        for k in range(4):
            g = GG + 8 * mt + 2 * k
            a(f'v_perm_b32 v{AI+4*mt+k}, v{g+1}, v{g}, s23')
        a(mf16(P + 4*mt, AR + 4*mt, C0, True))
        a(mf16(R + 4*mt, AR + 4*mt, S0, True))
        a(mf16(S + 4*mt, AI + 4*mt, C0, True))
        a(mf16(Q + 4*mt, AI + 4*mt, S0, True))
    st()
    T = GG
    for x in range(8):
        if x == 4: a('s_nop 1')
        tr = TW + 8 * (x >> 2) + (x & 3); ti = tr + 4
        a(f'v_mul_f32 v{T+2*x}, v{P+x}, v{ti}')
        a(f'v_mul_f32 v{P+x}, v{P+x}, v{tr}')
        a(f'v_fma_f32 v{P+x}, -v{R+x}, v{ti}, v{P+x}')
        a(f'v_fma_f32 v{R+x}, v{R+x}, v{tr}, v{T+2*x}')
        a(f'v_mul_f32 v{T+2*x+1}, v{Q+x}, v{ti}')
        a(f'v_mul_f32 v{Q+x}, v{Q+x}, v{tr}')
        a(f'v_fma_f32 v{Q+x}, v{S+x}, v{ti}, v{Q+x}')
        a(f'v_fma_f32 v{S+x}, v{S+x}, v{tr}, -v{T+2*x+1}')
    RA = AR; NA = AR + 4; RB = AI; NB = AI + 4
    L0 = a.label('t0'); L1 = a.label('tj')
    a('s_cmp_eq_u32 s16, 0')
    a(f's_cbranch_scc1 {L0}')
    for x in range(0, 8, 2):
        for z in range(2):
            a(f'v_sub_f32 v{T+z}, v{P+x+z}, v{Q+x+z}')
            a(f'v_add_f32 v{T+2+z}, v{P+x+z}, v{Q+x+z}')
            a(f'v_add_f32 v{T+4+z}, v{R+x+z}, v{S+x+z}')
            a(f'v_sub_f32 v{T+6+z}, v{S+x+z}, v{R+x+z}')
        a(f'v_cvt_pk_f16_f32 v{RA+x//2}, v{T}, v{T+1}')
        a(f'v_cvt_pk_f16_f32 v{RB+x//2}, v{T+2}, v{T+3}')
        a(f'v_cvt_pk_f16_f32 v{NA+x//2}, -v{T+4}, -v{T+5}')
        a(f'v_cvt_pk_f16_f32 v{NB+x//2}, v{T+6}, v{T+7}')
    a(f's_branch {L1}')
    a.place(L0)
    for x in range(0, 8, 2):
        a(f'v_cvt_pk_f16_f32 v{RA+x//2}, v{P+x}, v{P+x+1}')
        a(f'v_cvt_pk_f16_f32 v{RB+x//2}, v{S+x}, v{S+x+1}')
        a(f'v_cvt_pk_f16_f32 v{NA+x//2}, -v{R+x}, -v{R+x+1}')
        a(f'v_cvt_pk_f16_f32 v{NB+x//2}, -v{Q+x}, -v{Q+x+1}')
    a.place(L1)
    st()
    Y = lambda row, lt: P + 8 * row + 4 * lt
    for row, (rr, nn) in enumerate(((RA, NA), (RB, NB))):
        for lt, (C, Sx) in enumerate(((C0, S0), (C1, S1))):
            a(mf16(Y(row, lt), rr, C, True))
    for row, (rr, nn) in enumerate(((RA, NA), (RB, NB))):
        for lt, (C, Sx) in enumerate(((C0, S0), (C1, S1))):
            a(mf16(Y(row, lt), nn, Sx, False))
    a('s_nop 4')
    for row in range(2):
        for lt in range(2):
            a(f'ds_write_b128 v{6+lt}, {vr(Y(row, lt),4)} offset:{YB0 + row*4608}')
    XF = 16
    a('v_mov_b32 v4, 16.0')
    a('s_waitcnt lgkmcnt(0)')
    st()
    a('s_barrier')
    st()
    YF = 32
    for hf in range(2):
        for k in range(2):
            a(f'ds_read_b128 {vr(YF + 8*hf + 4*k, 4)}, v9 offset:{YB0 + hf*16*144 + 16*k}')
    a('s_waitcnt vmcnt(0)')
    for k in range(8):
        a(f'v_lshlrev_b32 v{XF+2*k}, 16, v{X+k}')
        a(f'v_and_b32 v{XF+2*k+1}, 0xffff0000, v{X+k}')
    for hf in range(2):
        a(f's_waitcnt lgkmcnt({2-2*hf})')
        for k in range(8):
            a(f'v_fma_f32 v{YF+8*hf+k}, v{YF+8*hf+k}, v4, v{XF+8*hf+k}')
        for k in range(4):
            a(f'v_cvt_pk_bf16_f32 v{X+4*hf+k}, v{YF+8*hf+2*k}, v{YF+8*hf+2*k+1}')
        a(f'buffer_store_dwordx4 {vr(X+4*hf,4)}, v8, s[4:7], s21 offen offset:{1024*hf}{stflag}')
    for k in range(8):
        a(f'v_lshlrev_b32 v{XF+2*k}, 16, v{X+k}')
        a(f'v_and_b32 v{XF+2*k+1}, 0xffff0000, v{X+k}')
    st()
    a(f'v_add_f32 v4, v{XF}, v{XF+1}')
    a(f'v_add_f32 v5, v{XF+2}, v{XF+3}')
    for k in range(4, 16, 2):
        a(f'v_add_f32 v4, v4, v{XF+k}')
        a(f'v_add_f32 v5, v5, v{XF+k+1}')
    a('v_add_f32 v4, v4, v5')
    wave_sum(a, 4, 5)
    a(f'v_mul_f32 v4, {f32(-1.0/1024)}, v4')
    for k in range(16):
        a(f'v_add_f32 v{XF+k}, v{XF+k}, v4')
    a(f'v_mul_f32 v6, v{XF}, v{XF}')
    a(f'v_mul_f32 v7, v{XF+1}, v{XF+1}')
    for k in range(2, 16, 2):
        a(f'v_fma_f32 v6, v{XF+k}, v{XF+k}, v6')
        a(f'v_fma_f32 v7, v{XF+k+1}, v{XF+k+1}, v7')
    a('v_add_f32 v6, v6, v7')
    wave_sum(a, 6, 7)
    a(f'v_mov_b32 v5, {f32(1e-5)}')
    a(f'v_fmamk_f32 v6, v6, {f32(1.0/1024)}, v5')
    a('v_rsq_f32 v6, v6')
    a('s_nop 0')
    for k in range(16):
        a(f'v_mul_f32 v{XF+k}, v{XF+k}, v6')
    for k in range(8):
        a(f'v_cvt_pk_bf16_f32 v{YF+k}, v{XF+2*k}, v{XF+2*k+1}')
    for hf in range(2):
        a(f'buffer_store_dwordx4 {vr(YF+4*hf,4)}, v8, s[12:15], s21 offen offset:{1024*hf}{stflag}')
    st()
    if stamp: a('s_waitcnt vmcnt(0)')
    st()
    st.dump(4, 's3')
    a('s_endpgm')
    if pf: prefetch_body(a, L_end, *pf, nthr=512)
    else:
        a.place(L_end); a('s_endpgm')
    return names, YB0 + 8 * 4608
```

```python
from asmlib import *
import struct
MB = 1 << 20
WS_XT = 0; WS_V = 4*MB; WS_X1 = 8*MB; WS_XN1 = 12*MB; WS_ZT = 16*MB; WS_HT = 32*MB; WS_X2 = 40*MB
WS_ST = 44*MB
WS_SIZE = 256*MB
WS_PS = 45*MB
LR = 48*MB
def f32(x): return struct.unpack('<I', struct.pack('<f', x))[0]
lg = lambda v: v.bit_length() - 1

class G:
    def __init__(self, **kw):
        self.flags = set()
        self.__dict__.update(kw)
        self.nst = self.K // 64
        self.NT = (self.BN // 16) if self.ksplit == 2 else (self.BN // 32)
        self.SPS = 1 if self.ksplit == 2 else 2
        self.nBp = self.BN * 128 // 1024
        self.nBw = (self.nBp + 3) // 4
        self.bbytes = self.nBp * 1024
        self.stage = 16384 + self.bbytes
        self.lds = self.stage * self.NS

def entry_stubs(a, names, body, vgpr, sgpr=96):
    for i, n in enumerate(names):
        a.begin_kernel(n)
        a(f's_mov_b32 s33, {i}')
        a(f's_mov_b32 s32, {i*LR}')
        if i != len(names) - 1:
            a(f's_branch {body}')
        a.end_kernel(n, vgpr, sgpr)
    a.place(body)

def srd(a, d, base_lo, off_sreg_or_imm, nbytes, layered=False):
    if layered:
        a(f's_add_u32 s{d+2}, s32, {off_sreg_or_imm}')
        off_sreg_or_imm = f's{d+2}'
    a(f's_add_u32 s{d}, s{base_lo}, {off_sreg_or_imm}')
    a(f's_addc_u32 s{d+1}, s{base_lo+1}, 0')
    a(f's_mov_b32 s{d+2}, {nbytes}')
    a(f's_mov_b32 s{d+3}, 0x20000')

WS_STAMP = 128*MB
class Stamper:
    def __init__(self, a, on, vreg=255):
        self.a = a; self.on = on; self.n = 0; self.v = vreg
    def init(self):
        if self.on:
            self.a(f'v_mov_b32 v{self.v}, 0')
    def __call__(self):
        if not self.on: return
        a = self.a
        a('s_memrealtime s[90:91]')
        a('s_memtime s[92:93]')
        a('s_waitcnt lgkmcnt(0)')
        a(f'v_writelane_b32 v{self.v}, s90, {2*self.n}')
        a(f'v_writelane_b32 v{self.v}, s92, {2*self.n+1}')
        self.n += 1
    def dump(self, kid, wave_sreg, wadd=0):
        if not self.on: return
        a = self.a
        a('s_lshl_b32 s90, s2, 3')
        a(f's_add_u32 s90, s90, {wave_sreg}')
        a(f's_add_u32 s90, s90, {wadd}')
        a('s_lshl_b32 s90, s90, 8')
        a('s_lshl_b32 s91, s33, 20')
        a('s_add_u32 s90, s90, s91')
        a(f's_add_u32 s90, s90, {WS_STAMP + kid*2*MB}')
        a(f'v_lshlrev_b32 v{self.v-1}, 2, v0')
        a(f'v_add_u32 v{self.v-1}, s90, v{self.v-1}')
        a(f'global_store_dword v{self.v-1}, v{self.v}, s[38:39]')

def gemm_kernel(a, c, epi):
    NT = c.NT; NS = c.NS
    body = a.label(c.name + '_body')
    entry_stubs(a, c.names, body, 256)
    L_end = a.label('end'); L_prod = a.label('prod')
    a('s_cmp_ge_u32 s2, 256')
    a(f's_cbranch_scc1 {L_end}')
    a(f's_load_dwordx2 s[34:35], s[0:1], {KA[c.a_src[0]]}')
    a(f's_load_dwordx2 s[36:37], s[0:1], {KA[c.b_src[0]]}')
    a(f's_load_dwordx2 s[38:39], s[0:1], {KA["ws"]}')
    epi.loads(a, c)
    nxm = 16 // c.xm
    a('s_and_b32 s18, s2, 7')
    a('s_lshr_b32 s19, s2, 3')
    a(f's_and_b32 s16, s18, {nxm-1}')
    a(f's_lshl_b32 s16, s16, {lg(c.xm)}')
    a(f's_and_b32 s20, s19, {c.xm-1}')
    a('s_add_u32 s16, s16, s20')
    a(f's_lshr_b32 s17, s18, {lg(nxm)}')
    a(f's_lshl_b32 s17, s17, {lg(c.xn)}')
    a(f's_lshr_b32 s20, s19, {lg(c.xm)}')
    a('s_add_u32 s17, s17, s20')
    a(f's_mov_b32 s31, {(-(NS-1)*c.stage) & 0xffffffff}')
    a('v_lshrrev_b32 v1, 6, v0')
    a('v_and_b32 v0, 63, v0')
    a('s_nop 0')
    a('v_readfirstlane_b32 s3, v1')
    a('s_nop 3')
    a('s_cmp_ge_u32 s3, 4')
    a(f's_cbranch_scc1 {L_prod}')

    FS = 16 + 4 * NT
    V0 = 16
    FA = lambda s, i: V0 + s * FS + 4 * i
    FB = lambda s, j: V0 + s * FS + 16 + 4 * j
    ACC0 = V0 + 2 * FS
    ACC = lambda i, j: ACC0 + 4 * (i * NT + j)
    c.ACC = ACC; c.ACC0 = ACC0; c.VTOP = ACC0 + 16 * NT; c.V0 = V0; c.FS = FS
    stc = Stamper(a, 'stamp' in c.flags); stc.init(); stc()
    a('s_and_b32 s21, s3, 1')
    a('s_lshr_b32 s22, s3, 1')
    epi.cons_pre(a, c)
    a('v_and_b32 v1, 15, v0')
    a('v_lshrrev_b32 v2, 4, v0')
    addr = []
    a('v_lshrrev_b32 v3, 1, v1')
    a('v_xor_b32 v3, v2, v3')
    a('v_lshlrev_b32 v3, 4, v3')
    a('v_lshl_add_u32 v3, v1, 7, v3')
    if c.ksplit == 2:
        a('s_lshl_b32 s24, s22, 6')
        a('v_xor_b32 v3, s24, v3')
    if c.amode == 'kc':
        a('s_lshl_b32 s23, s21, 13')
        if c.ksplit == 2:
            a('s_lshl_b32 s24, s22, 12')
            a('s_add_u32 s25, s23, s24')
            a('s_xor_b32 s26, s25, 4096')
            a('v_add_u32 v4, s25, v3')
            a('v_add_u32 v5, s26, v3')
            aread = lambda s, i, h: [f'ds_read_b128 {vr(FA(s, i), 4)}, v{4 + (i >> 1)} offset:{(i & 1)*2048}']
        else:
            a('v_add_u32 v4, s23, v3')
            a('v_xor_b32 v5, 64, v4')
            aread = lambda s, i, h: [f'ds_read_b128 {vr(FA(s, i), 4)}, v{4 + h} offset:{i*2048}']
        addr += [4, 5]
    else:
        assert c.ksplit == 2
        a('v_bfe_u32 v8, v0, 2, 2')
        a('v_lshl_add_u32 v9, v2, 3, v8')
        a('v_lshlrev_b32 v9, 8, v9')
        a('v_and_b32 v10, 3, v0')
        a('v_lshl_add_u32 v9, v10, 3, v9')
        a('s_lshl_b32 s24, s22, 13')
        a('v_add_u32 v9, s24, v9')
        a('v_bfe_u32 v10, v0, 4, 1')
        a('v_lshl_add_u32 v8, v10, 2, v8')
        a('s_lshl_b32 s24, s21, 2')
        a('s_lshl_b32 s25, s22, 1')
        a('s_add_u32 s24, s24, s25')
        a('v_xor_b32 v8, s24, v8')
        for i in range(4):
            a(f'v_xor_b32 v10, {i}, v8')
            a(f'v_lshl_add_u32 v{4+i}, v10, 5, v9')
        aread = lambda s, i, h: [f'ds_read_b64_tr_b16 {vr(FA(s, i) + 2*u, 2)}, v{4+i} offset:{u*1024}' for u in range(2)]
        addr += [4, 5, 6, 7]
    if c.bmode in ('kc', 'kcnorm'):
        assert c.ksplit == 2
        a('v_add_u32 v11, 16384, v3')
        bread = lambda s, j, h: [f'ds_read_b128 {vr(FB(s, j), 4)}, v11 offset:{j*2048}']
        addr += [11]
    else:
        CPR = c.BN // 8
        a('v_bfe_u32 v8, v0, 2, 2')
        a('v_lshl_add_u32 v8, v2, 3, v8')
        a(f'v_mul_u32_u24 v8, {CPR*16}, v8')
        a('v_and_b32 v9, 3, v0')
        a('v_lshl_add_u32 v8, v9, 3, v8')
        a('v_add_u32 v8, 16384, v8')
        if CPR == 28:
            assert c.ksplit == 1
            a('s_mul_i32 s24, s22, 224')
            a('v_add_u32 v8, s24, v8')
            a('v_and_b32 v9, 1, v2')
            a('v_lshlrev_b32 v9, 5, v9')
            a('v_add_u32 v10, v8, v9')
            a('v_sub_u32 v9, v8, v9')
            a('s_cmp_eq_u32 s22, 0')
            a('s_cselect_b64 s[26:27], -1, 0')
            a('v_cndmask_b32 v11, v9, v10, s[26:27]')
            a('v_cndmask_b32 v12, v10, v9, s[26:27]')
            bread = lambda s, j, h: [f'ds_read_b64_tr_b16 {vr(FB(s, j) + 2*u, 2)}, v{11 + (j & 1)} offset:{(32*h + 4*u)*CPR*16 + j*32}' for u in range(2)]
            addr += [11, 12]
        else:
            assert CPR == 8 and c.ksplit == 2
            a(f's_mul_i32 s25, s22, {32*CPR*16}')
            a('v_add_u32 v8, s25, v8')
            a('v_bfe_u32 v9, v0, 3, 1')
            a('v_bfe_u32 v10, v0, 4, 1')
            a('v_lshl_add_u32 v9, v10, 1, v9')
            for j in range(4):
                a(f'v_xor_b32 v10, {j}, v9')
                a(f'v_lshl_add_u32 v{11+j}, v10, 5, v8')
            bread = lambda s, j, h: [f'ds_read_b64_tr_b16 {vr(FB(s, j) + 2*u, 2)}, v{11+j} offset:{4*u*CPR*16}' for u in range(2)]
            addr += [11, 12, 13, 14]
    def reads(s, h):
        r = aread(s, 0, h)
        for j in range(NT):
            r += bread(s, j, h)
            if j == 0:
                for i in range(1, 4):
                    r += aread(s, i, h)
        return r
    def mfmas(s):
        m = []
        for i in range(4):
            for j in range(NT):
                x, y = (FB(s, j), FA(s, i)) if c.swap else (FA(s, i), FB(s, j))
                m.append(f'v_mfma_f32_16x16x32_bf16 {vr(ACC(i, j), 4)}, {vr(x, 4)}, {vr(y, 4)}, {vr(ACC(i, j), 4)}')
        return m
    def interleave(ms, rs):
        rs = list(rs)
        if 'no_mfma' in c.flags: ms = []
        if 'no_reads' in c.flags: rs = [r for r in rs if not r.startswith('ds_')]
        per = max(1, -(-len(rs) // max(1, len(ms) - 4)))
        for k, m in enumerate(ms):
            a(m)
            for _ in range(per):
                if rs:
                    a(rs.pop(0))
        for r in rs:
            a(r)
    for r in range(ACC0, ACC0 + 16 * NT):
        a(f'v_mov_b32 v{r}, 0')
    epi.cons_pre2(a, c)
    if 'simscale' in c.flags:
        a('v_mov_b32 v250, 1.0')
        for r in range(228, 248): a(f'v_mov_b32 v{r}, 0')
    PFV = 250
    if 'l2pf' in c.flags:
        nA = c.xm * 128 // 32; nB = c.xn * c.BN // 32
        a('s_waitcnt lgkmcnt(0)')
        srd(a, 52, 34, c.a_src[1], c.a_bytes)
        srd(a, 56, 36, c.b_src[1], c.b_bytes)
        a('s_lshr_b32 s50, s2, 3')
        a(f'v_mov_b32 v{PFV+2}, 0x7fffff00')
        for (reg, tile, xb, rows, n, ld) in ((PFV, 's16', c.xm, 128, nA, c.lda), (PFV+1, 's17', c.xn, c.BN, nB, c.ldb)):
            a(f's_and_b32 s51, {tile}, {~(xb-1) & 15}')
            a(f's_mul_i32 s51, s51, {rows}')
            a(f's_mul_i32 s60, s50, {n}')
            a('s_add_u32 s51, s51, s60')
            a(f'v_add_u32 v{reg}, s51, v0')
            a(f'v_mul_u32_u24 v{reg}, {ld}, v{reg}')
            a(f'v_cmp_gt_u32 vcc, {n}, v0')
            a('s_nop 1')
            a(f'v_cndmask_b32 v{reg}, v{PFV+2}, v{reg}, vcc')
        a('s_lshl_b32 s60, s3, 7')
        a(f's_add_u32 s60, s60, {c.pf0*128}')
        for k in range(c.pfn):
            a(f'buffer_load_dword v{PFV+3}, v{PFV}, s[52:55], s60 offen')
            a(f'buffer_load_dword v{PFV+3}, v{PFV+1}, s[56:59], s60 offen')
            a('s_add_u32 s60, s60, 512')
    def l2pf():
        if 'l2pf' not in c.flags: return
        L = a.label('nopf')
        a('s_and_b32 s61, s30, 1')
        a('s_cmp_eq_u32 s61, 0')
        a(f's_cbranch_scc1 {L}')
        a(f's_cmp_ge_u32 s60, {c.nst*128}')
        a(f's_cbranch_scc1 {L}')
        a(f'buffer_load_dword v{PFV+3}, v{PFV}, s[52:55], s60 offen')
        a(f'buffer_load_dword v{PFV+3}, v{PFV+1}, s[56:59], s60 offen')
        a('s_add_u32 s60, s60, 512')
        a.place(L)
    def advance():
        r = ['s_add_u32 s28, s28, 1',
             f's_cmp_eq_u32 s28, {NS}',
             f's_cselect_b32 s29, s31, {c.stage}',
             's_cselect_b32 s28, 0, s28']
        for v in addr:
            r.append(f'v_add_u32 v{v}, s29, v{v}')
        return r
    a('s_mov_b32 s28, 0')
    stc()
    a('s_barrier')
    stc()
    for r in reads(0, 0):
        a(r)
    if c.SPS == 1:
        for x in advance():
            a(x)
    T = c.nst * c.SPS
    npair = T // 2
    L_loop = a.label('cloop')
    a(f's_mov_b32 s30, {npair - 1}')
    def substep(s, h_next, last_in_stage, adv_after, do_reads=True):
        a('s_waitcnt lgkmcnt(0)')
        if last_in_stage:
            a('s_barrier')
        rs = reads(1 - s, h_next) if do_reads else []
        if adv_after and do_reads:
            rs = rs + advance()
        if 'simscale' in c.flags and c.name.startswith('g2') and do_reads:
            ms = mfmas(s)
            for i in range(4):
                ms.append(f'v_mfma_f32_16x16x32_bf16 v[{232+4*i}:{235+4*i}], {vr(FA(s, i), 4)}, v[228:231], v[{232+4*i}:{235+4*i}]')
            ar = []
            for i in range(4): ar += aread(1 - s, i, h_next)
            ar += ['ds_read_b128 v[216:219], v11 offset:14336', 'ds_read_b128 v[220:223], v11 offset:14352']
            br = []
            for j in range(NT): br += bread(1 - s, j, h_next)
            br += ['ds_read_b128 v[224:227], v11 offset:14368'] + advance()
            va = []
            for i in range(4):
                for d in range(4):
                    r = FA(1 - s, i) + d
                    va += [f'v_lshlrev_b32 v248, 16, v{r}', f'v_and_b32 v249, 0xffff0000, v{r}',
                           f'v_mul_f32 v248, v248, v{250}', f'v_mul_f32 v249, v249, v{250}', f'v_cvt_pk_bf16_f32 v{r}, v248, v249']
            seq = ar + br[:4] + [f's_waitcnt lgkmcnt(4)']
            rest = br[4:]
            k = 0
            for m in ms:
                a(m)
                if seq:
                    a(seq.pop(0))
                    if seq: a(seq.pop(0))
                else:
                    for _ in range(3):
                        if va: a(va.pop(0))
                    if rest: a(rest.pop(0))
            for x in va + rest: a(x)
            return
        interleave(mfmas(s), rs)
    def pair(final):
        if c.SPS == 2:
            substep(0, 1, False, True)
            substep(1, 0, True, False, do_reads=not final)
        else:
            substep(0, 0, True, True)
            substep(1, 0, True, True, do_reads=not final)
    a('.p2align 6')
    a.place(L_loop)
    pair(False)
    l2pf()
    epi.loop_hook(a, c)
    a('s_sub_u32 s30, s30, 1')
    a('s_cmp_lg_u32 s30, 0')
    a(f's_cbranch_scc1 {L_loop}')
    epi.cons_late(a, c)
    pair(True)
    stc()
    if 'no_epi' not in c.flags:
        epi.consumer(a, c)
    stc()
    if stc.on:
        a('s_waitcnt vmcnt(0)')
    stc()
    stc.dump(c.kid, 's3')
    a('s_endpgm')

    a('.p2align 6')
    a.place(L_prod)
    a('s_sub_u32 s3, s3, 4')
    if 'pprio' in c.flags: a('s_setprio 3')
    VA = 8; VB = 12
    def kc_lane(swz):
        a('v_lshrrev_b32 v1, 3, v0')
        a('s_lshl_b32 s20, s3, 3')
        a('v_add_u32 v1, s20, v1')
        a('v_and_b32 v2, 7, v0')
        a('v_lshrrev_b32 v3, 4, v0')
        a('v_xor_b32 v3, v2, v3')
        a('s_and_b32 s20, s3, 1')
        a('s_lshl_b32 s20, s20, 2')
        a('v_xor_b32 v3, s20, v3')
        a('v_lshlrev_b32 v3, 4, v3')
        a('v_lshlrev_b32 v2, 4, v2')
    kc_lane(True)
    if c.amode == 'kc':
        a(f's_mov_b32 s20, {c.lda}')
        a('v_mul_lo_u32 v4, v1, s20')
        a(f'v_add_u32 v{VA}, v4, v3')
        for p in range(1, 4):
            a(f'v_add_u32 v{VA+p}, {32*p*c.lda}, v{VA}')
        ka_step = 128; atile = 128 * c.lda
    else:
        a('v_lshrrev_b32 v4, 4, v0')
        a('s_lshl_b32 s20, s3, 2')
        a('v_add_u32 v5, s20, v4')
        a(f's_mov_b32 s20, {c.lda}')
        a('v_mul_lo_u32 v5, v5, s20')
        a('s_lshr_b32 s20, s3, 1')
        a('s_lshl_b32 s20, s20, 2')
        a('v_or_b32 v4, s20, v4')
        a('v_lshlrev_b32 v4, 1, v4')
        a('v_and_b32 v6, 15, v0')
        a('v_xor_b32 v4, v4, v6')
        a(f'v_lshl_add_u32 v{VA}, v4, 4, v5')
        for p in range(1, 4):
            a(f'v_add_u32 v{VA+p}, {16*p*c.lda}, v{VA}')
        ka_step = 64 * c.lda; atile = 256
    if c.bmode in ('kc', 'kcnorm'):
        a(f's_mov_b32 s20, {c.ldb}')
        a('v_mul_lo_u32 v4, v1, s20')
        a(f'v_add_u32 v{VB}, v4, {"v2" if c.bmode == "kcnorm" else "v3"}')
        for p in range(1, c.nBw):
            a(f'v_add_u32 v{VB+p}, {32*p*c.ldb}, v{VB}')
        kb_step = 128; btile = c.BN * c.ldb
        if c.bmode == 'kcnorm':
            a('v_lshl_add_u32 v20, v1, 7, v3')
            a('v_add_u32 v20, 16384, v20')
            a('v_lshlrev_b32 v21, 2, v2')
            a(f'v_add_u32 v21, {c.tab}, v21')
    else:
        CPR = c.BN // 8
        a('s_lshl_b32 s20, s3, 6')
        a('v_add_u32 v1, s20, v0')
        a(f's_mov_b32 s21, {c.ldb}')
        if getattr(c, 'mixed', False):
            a('s_and_b32 s45, s17, 1')
            a('s_add_u32 s44, s45, 3')
            a('s_mul_i32 s46, s45, 192')
            a('s_add_u32 s46, s46, 3584')
            a('v_mov_b32 v24, s46')
            a('s_lshl_b32 s47, s44, 5')
            a('s_add_u32 s46, s46, s47')
            a('v_mov_b32 v25, s46')
            a('s_lshl_b32 s46, s45, 8')
            a('s_sub_u32 s46, s46, s47')
            a('v_mov_b32 v26, s46')
            a('s_sub_u32 s47, 224, s47')
            a('s_add_u32 s46, s46, s47')
            a('v_mov_b32 v27, s46')
        for b in range(c.nBw):
            a(f'v_add_u32 v2, {256*b}, v1')
            if CPR == 28:
                a('v_mul_u32_u24 v3, 2341, v2')
                a('v_lshrrev_b32 v3, 16, v3')
                a('v_mul_u32_u24 v4, 28, v3')
                a('v_sub_u32 v4, v2, v4')
                a('v_bfe_u32 v5, v3, 3, 1')
                a('v_lshlrev_b32 v5, 1, v5')
                a('v_xor_b32 v4, v4, v5')
            else:
                a('v_lshrrev_b32 v3, 3, v2')
                a('v_and_b32 v4, 7, v2')
                a('v_bfe_u32 v5, v3, 1, 1')
                a('v_bfe_u32 v6, v3, 3, 1')
                a('v_lshl_add_u32 v5, v6, 1, v5')
                a('v_lshlrev_b32 v5, 1, v5')
                a('v_xor_b32 v4, v4, v5')
            a('v_mul_lo_u32 v3, v3, s21')
            if getattr(c, 'mixed', False):
                a('v_lshrrev_b32 v5, 1, v4')
                a('v_and_b32 v4, 1, v4')
                a('v_lshl_add_u32 v3, v4, 4, v3')
                a('v_cmp_lt_u32 vcc, 6, v5')
                a('v_subrev_u32 v6, 7, v5')
                a('s_nop 0')
                a('v_cndmask_b32 v5, v5, v6, vcc')
                a('v_cndmask_b32 v6, v24, v25, vcc')
                a('v_cndmask_b32 v7, v26, v27, vcc')
                a('v_cmp_gt_u32 vcc, s44, v5')
                a('v_lshl_add_u32 v3, v5, 5, v3')
                a('s_nop 0')
                a('v_cndmask_b32 v6, v7, v6, vcc')
                a(f'v_add_u32 v{VB+b}, v6, v3')
            else:
                a(f'v_lshl_add_u32 v{VB+b}, v4, 4, v3')
        kb_step = 64 * c.ldb; btile = c.BN * 2
    a(f's_mul_i32 s20, s16, {atile}')
    a(f's_sub_u32 s6, {c.a_bytes}, s20')
    a(f's_add_u32 s20, s20, {c.a_src[1]}')
    if c.a_src[0] == 'ws': a('s_add_u32 s20, s20, s32')
    if getattr(c, 'mixed', False):
        a('s_lshr_b32 s21, s17, 1')
        a(f's_mul_i32 s21, s21, {btile}')
    else:
        a(f's_mul_i32 s21, s17, {btile}')
    a(f's_sub_u32 s10, {c.b_bytes}, s21')
    a(f's_add_u32 s21, s21, {c.b_src[1]}')
    if c.b_src[0] == 'ws': a('s_add_u32 s21, s21, s32')
    a('s_mov_b32 s7, 0x20000')
    a('s_mov_b32 s11, 0x20000')
    a('s_lshl_b32 s24, s3, 10')
    a('s_mov_b32 s22, 0')
    a('s_mov_b32 s23, 0')
    if 'krot' in c.flags:
        a('s_lshr_b32 s42, s2, 3')
        a(f's_mul_i32 s42, s42, {c.krot}')
        a(f's_and_b32 s42, s42, {c.krotmask}')
        a(f's_mul_i32 s22, s42, {ka_step}')
        a(f's_mul_i32 s23, s42, {kb_step}')
    a('s_mov_b32 s28, 0')
    a('s_waitcnt lgkmcnt(0)')
    a('s_add_u32 s4, s34, s20')
    a('s_addc_u32 s5, s35, 0')
    a('s_add_u32 s8, s36, s21')
    a('s_addc_u32 s9, s37, 0')
    def dmaA(p):
        return [f's_add_u32 m0, s24, {p*4096}', 's_nop 0', f'buffer_load_dwordx4 v{VA+p}, s[4:7], s22 offen lds']
    def dmaB(p):
        return [f's_add_u32 m0, s24, {16384 + p*4096}', 's_nop 0', f'buffer_load_dwordx4 v{VB+p}, s[8:11], s23 offen lds']
    def slot_adv():
        return ['s_add_u32 s28, s28, 1', f's_cmp_eq_u32 s28, {NS}', f's_cselect_b32 s29, s31, {c.stage}',
                's_cselect_b32 s28, 0, s28', 's_add_u32 s24, s24, s29']
    def ploop(nBw):
        npc = 4 + nBw
        D = NS - 1
        assert D * npc <= 63
        Lp = a.label('ploop'); Lw = a.label('pwait'); Lb = a.label('pbar')
        a('s_mov_b32 s30, 0')
        a('s_mov_b32 s40, 0')
        a('s_mov_b32 s41, 2')
        a.place(Lp)
        if 'no_dma' not in c.flags:
            for p in range(max(4, nBw)):
                if p < 4:
                    for x in dmaA(p): a(x)
                if p < nBw:
                    for x in dmaB(p): a(x)
        a(f's_add_u32 s22, s22, {ka_step}')
        a(f's_add_u32 s23, s23, {kb_step}')
        if 'wrap4' in c.flags:
            a(f's_cmp_eq_u32 s22, {4*ka_step}')
            a('s_cselect_b32 s22, 0, s22')
            a('s_cselect_b32 s23, 0, s23')
        if 'krot' in c.flags:
            a(f's_cmp_eq_u32 s22, {c.nst*ka_step}')
            a('s_cselect_b32 s22, 0, s22')
            a('s_cselect_b32 s23, 0, s23')
        for x in slot_adv(): a(x)
        a('s_add_u32 s30, s30, 1')
        a('s_cmp_lt_u32 s30, s41')
        a(f's_cbranch_scc1 {Lp}')
        a.place(Lw)
        a('s_sub_u32 s42, s30, s40')
        labs = {k: a.label('pw') for k in range(0, D)}
        for k in range(D - 1, 0, -1):
            a(f's_cmp_eq_u32 s42, {k+1}')
            a(f's_cbranch_scc1 {labs[k]}')
        a('s_waitcnt vmcnt(0)')
        a(f's_branch {Lb}')
        for k in range(1, D):
            a.place(labs[k])
            a(f's_waitcnt vmcnt({k*npc})')
            if k != D - 1:
                a(f's_branch {Lb}')
        a.place(Lb)
        a('s_barrier')
        a('s_add_u32 s40, s40, 1')
        a('s_add_u32 s41, s30, 2')
        a(f's_add_u32 s42, s40, {D}')
        a('s_min_u32 s41, s41, s42')
        a(f's_min_u32 s41, s41, {c.nst}')
        a('s_cmp_lt_u32 s30, s41')
        a(f's_cbranch_scc1 {Lp}')
        a(f's_cmp_lt_u32 s40, {c.nst}')
        a(f's_cbranch_scc1 {Lw}')
    if c.nBp % 4:
        L2 = a.label('pl2'); L3 = a.label('pl3')
        a(f's_cmp_ge_u32 s3, {c.nBp % 4}')
        a(f's_cbranch_scc1 {L2}')
        ploop(c.nBw)
        a(f's_branch {L3}')
        a.place(L2)
        ploop(c.nBw - 1)
        a.place(L3)
    else:
        ploop(c.nBw)
    a('s_barrier')
    if 'no_epi' not in c.flags:
        epi.producer(a, c)
    a.place(L_end)
    a('s_endpgm')
```

```python
import sys
from epis import *
from fft3 import *
def build(path, st=' sc1', extra_empty=0, flags=(), pf=True):
    a = Asm()
    stamp = 'stamp' in flags
    pre, pre_lds = pre_kernel(a, st, ('w_in', 1024*7168, 4*MB, 3*MB) if pf else None)
    a1, a1_lds = a1v3_kernel(a, st, ('w_in', 1024*7168, 2*MB, 2*MB) if pf else None, stamp)
    a2, a2_lds = a2v3_kernel(a, st, ('w_in', 1024*7168, 0, 2*MB) if pf else None, stamp)
    g1, g2, g3 = make_gemms(a, st, flags)
    a.launch(pre, 512 if pf else 256, 256, pre_lds)
    for L in range(2):
        a.launch(a1[L], 512 if (pf and L == 0) else 256, 512, a1_lds)
        a.launch(a2[L], 512 if (pf and L == 0) else 256, 512, a2_lds)
        a.launch(g1.names[L], 256, 512, g1.lds)
        a.launch(g2.names[L], 256, 512, g2.lds)
        a.launch(g3.names[L], 256, 512, g3.lds)
    a.place('code_end')
    open(path, 'w').write(a.text(HEADER))
if __name__ == '__main__':
    build('interleave_layers__spectral_fnet__mixer_gmlp__prompt.s')
    build('full_st.s', flags=['stamp'])
```
